```python
import torch

def _softmax(x, axis=-1):
    return torch.softmax(x, dim=axis)
def _gelu(x):
    return torch.nn.functional.gelu(x, approximate="tanh")
def _silu(x):
    return torch.nn.functional.silu(x)
def _sigmoid(x):
    return torch.sigmoid(x)
def _layernorm(x, axis=-1, eps=1e-5):
    m = x.mean(dim=axis, keepdim=True)
    v = x.var(dim=axis, keepdim=True, unbiased=False)
    return (x - m) / torch.sqrt(v + eps)
def _scatter_add(tgt, idx, src, axis=0):
    return tgt.clone().index_add_(axis, idx, src)
def _segment_sum(src, seg, n):
    out = torch.zeros((n,) + src.shape[1:], dtype=src.dtype)
    return out.index_add_(0, seg, src)
def _pad(x, pw):
    flat = tuple(v for pair in reversed(pw) for v in pair)
    return torch.nn.functional.pad(x, flat)

kernel_name = 'gated_mix__sliding_local_dilated__grouped_kv_mqa__prompt'

def setup_inputs():

    _w = (lambda a: (lambda t: t.to(torch.bfloat16) if t.is_floating_point() else t)(torch.as_tensor(a)))
    def _A_setup():
        B, S, D = 1, 2048, 512
        return {
            "x": _w((lambda *s: torch.randn(*s, dtype=torch.bfloat16) * 0.05)(B, S, D)),
            "wqkv": _w((lambda *s: torch.randn(*s, dtype=torch.bfloat16) * 0.8)(D, 3 * D)),
            "wo": _w((lambda *s: torch.randn(*s, dtype=torch.bfloat16) * 0.05)(D, D)),
        }
    _A_in = _A_setup()

    def _B_setup():
        B, S, D, H = 1, 2048, 512, 32
        Dh = D // H
        return {
            "x": _w((lambda *s: torch.randn(*s, dtype=torch.bfloat16) * 0.05)(B, S, D)),
            "wq": _w((lambda *s: torch.randn(*s, dtype=torch.bfloat16) * 1.6)(D, H * Dh)),
            "wk": _w((lambda *s: torch.randn(*s, dtype=torch.bfloat16) * 1.6)(D, Dh)),
            "wv": _w((lambda *s: torch.randn(*s, dtype=torch.bfloat16) * 0.2)(D, Dh)),
            "wo": _w((lambda *s: torch.randn(*s, dtype=torch.bfloat16) * 0.2)(H * Dh, D)),
        }
    _B_in = _B_setup()

    return {
        "A_x": _A_in["x"],
        "A_wqkv": _A_in["wqkv"],
        "A_wo": _A_in["wo"],
        "B_x": _B_in["x"],
        "B_wq": _B_in["wq"],
        "B_wk": _B_in["wk"],
        "B_wv": _B_in["wv"],
        "B_wo": _B_in["wo"],
        "gate_w": _w((lambda *s: torch.randn(*s, dtype=torch.bfloat16) * 0.05)(512) * 16.0),
    }

def reference(A_x, A_wqkv, A_wo, B_x, B_wq, B_wk, B_wv, B_wo, gate_w):
    def _A_ref(x, wqkv, wo):
        B, S, D = x.shape
        H = 32; Dh = D // H
        W, dil = 8, 2
        qkv = (lambda x, *d: x.permute(*d))((x @ wqkv).reshape(B, S, 3, H, Dh), 2, 0, 3, 1, 4)
        q, k, v = qkv[0], qkv[1], qkv[2]
        scale = Dh ** -0.5
        pos = torch.arange(S)
        off = torch.arange(W) * dil
        idx = pos[:, None] - off[None, :]
        mask = idx >= 0
        idx_c = torch.where(mask, idx, 0).reshape(-1)
        kg = k[:, :, idx_c, :].reshape(B, H, S, W, Dh)
        vg = v[:, :, idx_c, :].reshape(B, H, S, W, Dh)
        logits = torch.einsum("bhsd,bhswd->bhsw", q, kg) * scale
        logits = torch.where(mask[None, None, :, :], logits, -1e9)
        attn = _softmax(logits, axis=-1)
        o = torch.einsum("bhsw,bhswd->bhsd", attn, vg)
        return (lambda x, *d: x.permute(*d))(o, 0, 2, 1, 3).reshape(B, S, D) @ wo

    def _B_ref(x, wq, wk, wv, wo):
        B, S, D = x.shape
        H = 32
        Dh = D // H
        q = (lambda x, *d: x.permute(*d))((x @ wq).reshape(B, S, H, Dh), 0, 2, 1, 3)
        k = x @ wk
        v = x @ wv
        scores = torch.einsum("bhqd,bkd->bhqk", q, k) * (Dh ** -0.5)
        p = _softmax(scores, axis=-1)
        o = torch.einsum("bhqk,bkd->bhqd", p, v)
        return (lambda x, *d: x.permute(*d))(o, 0, 2, 1, 3).reshape(B, S, H * Dh) @ wo

    x = A_x
    g = _sigmoid((x * gate_w).sum(-1, keepdims=True))
    a = _A_ref(x, A_wqkv, A_wo)
    b = _B_ref(x, B_wq, B_wk, B_wv, B_wo)
    return g * a + (1 - g) * b
```

```python
class Asm:
    def __init__(self):
        self.lines = []
        self.lds_q = []
        self.vm_q = []
        self.nv = 0
        self.vmax = 0
    def e(self, s):
        self.lines.append("    " + s)
    def c(self, s):
        self.lines.append("    ; " + s)
    def label(self, s):
        self.lines.append(s + ":")
    def raw(self, s):
        self.lines.append(s)
    def valloc(self, n, align=1):
        if n >= 2 and align < 2: align = 2
        self.nv = (self.nv + align - 1) // align * align
        r = self.nv
        self.nv += n
        self.vmax = max(self.vmax, self.nv)
        return r
    def lds(self, s, tag=None):
        self.e(s); self.lds_q.append(tag)
    def vm(self, s, tag=None):
        self.e(s); self.vm_q.append(tag)
    def _need(self, q, tags):
        idx = -1
        for i, t in enumerate(q):
            if t in tags: idx = i
        return idx
    def wait_lds(self, *tags):
        idx = self._need(self.lds_q, tags)
        if idx < 0: return
        n = len(self.lds_q) - 1 - idx
        self.e(f"s_waitcnt lgkmcnt({min(n,15)})")
        self.lds_q = self.lds_q[idx+1:] if n <= 15 else self.lds_q[-15:]
    def wait_vm(self, *tags):
        idx = self._need(self.vm_q, tags)
        if idx < 0: return
        n = len(self.vm_q) - 1 - idx
        self.e(f"s_waitcnt vmcnt({min(n,63)})")
        self.vm_q = self.vm_q[idx+1:] if n <= 63 else self.vm_q[-63:]
    def wait_lds_all(self):
        self.e("s_waitcnt lgkmcnt(0)"); self.lds_q = []
    def wait_vm_all(self):
        self.e("s_waitcnt vmcnt(0)"); self.vm_q = []
    def text(self):
        return "\n".join(self.lines) + "\n"

def v(r, n=1):
    return f"v{r}" if n == 1 else f"v[{r}:{r+n-1}]"
def s(r, n=1):
    return f"s{r}" if n == 1 else f"s[{r}:{r+n-1}]"

def kernel_header(name):
    return f""".text
.globl {name}
.p2align 8
.type {name},@function
{name}:
"""

def kernel_desc(name, nvgpr, nsgpr=102):
    nv = (nvgpr + 7) // 8 * 8
    return f""".section .rodata,"a"
.p2align 6
.amdhsa_kernel {name}
  .amdhsa_next_free_vgpr {nv}
  .amdhsa_next_free_sgpr {nsgpr}
  .amdhsa_accum_offset {nv}
  .amdhsa_group_segment_fixed_size 0
  .amdhsa_kernarg_size 96
  .amdhsa_user_sgpr_count 2
  .amdhsa_user_sgpr_kernarg_segment_ptr 1
  .amdhsa_system_sgpr_workgroup_id_x 1
.end_amdhsa_kernel
"""
```

```python
from dsl import *
import struct, math

WS_QF = 0x000000
WS_KV = 0x200000
WS_G  = 0x220000
WS_KN = 0x222000
WS_VN = 0x222200
WS_OF = 0x300000
WS_WF = 0x700000
WS_SIZE = 0x800000
def f2u(x): return struct.unpack("<I", struct.pack("<f", x))[0]
C_SCALE = f2u(0.25 * math.log2(math.e))
NEG_BIG = f2u(-1e30)
LOG2E = f2u(math.log2(math.e))

P_X, P_WQKV, P_AWO, P_BX, P_WQ, P_WK, P_WV, P_BWO, P_GW, P_OUT, P_DBG, P_WS = [44 + 2*i for i in range(12)]

def load_kernargs(a):
    a.e("s_load_dwordx16 s[44:59], s[0:1], 0")
    a.e("s_load_dwordx8 s[60:67], s[0:1], 64")

def srd(a, r, p, size):
    a.e(f"s_mov_b32 s{r}, s{p}")
    a.e(f"s_mov_b32 s{r+1}, s{p+1}")
    a.e(f"s_mov_b32 s{r+2}, {size}")
    a.e(f"s_mov_b32 s{r+3}, 0x00020000")

def decode_wg(a, s_rb, s_hp, t0, t1):
    a.e(f"s_and_b32 s{t0}, s2, 7")
    a.e(f"s_lshr_b32 s{t1}, s2, 3")
    a.e(f"s_lshr_b32 s{s_rb}, s{t0}, 1")
    a.e(f"s_lshl_b32 s{s_rb}, s{s_rb}, 2")
    a.e(f"s_and_b32 s{s_hp}, s{t1}, 3")
    a.e(f"s_add_u32 s{s_rb}, s{s_rb}, s{s_hp}")
    a.e(f"s_and_b32 s{s_hp}, s{t0}, 1")
    a.e(f"s_lshl_b32 s{s_hp}, s{s_hp}, 3")
    a.e(f"s_lshr_b32 s{t1}, s{t1}, 2")
    a.e(f"s_add_u32 s{s_hp}, s{s_hp}, s{t1}")

XST = 20480
WB = 81920
WST = 16384
KWB = 147456
K1_LDS = 163840

def gen_k1(name):
    a = Asm()
    sX, sW, sKW, sGW, sWO, sWS = 8, 12, 16, 20, 24, 28
    sWv = 3
    sRB, sHP, sPG, sKIND = 32, 33, 34, 35
    sXh, sXm, sStr16, sWoff = 36, 37, 38, 39
    sT0, sT1, sT2, sT3 = 40, 41, 42, 43
    sM0X, sM0W = 68, 69
    sC = 70
    sFo = 71
    a.valloc(1)
    vL = a.valloc(1); vH = a.valloc(1); vI = a.valloc(1)
    vL16 = a.valloc(1)
    t0 = a.valloc(1); t1 = a.valloc(1); t2 = a.valloc(1); t3 = a.valloc(1)
    Aq = a.valloc(16, 4); Ak = a.valloc(16, 4); Av = a.valloc(16, 4); AQ = a.valloc(16, 4)
    Hk = a.valloc(16, 4); Hv = a.valloc(16, 4)
    J = a.valloc(4, 4); Jg = a.valloc(4, 4)
    M = a.valloc(24, 4)
    WO = a.valloc(8, 4)
    free0 = a.nv
    XF = [a.valloc(4, 4), a.valloc(4, 4)]
    WF = [[a.valloc(4, 4) for _ in range(4)] for _ in range(2)]
    XH = a.valloc(4, 4); SX = a.valloc(2, 2); SW = a.valloc(2, 2)
    GW = a.valloc(16, 4)
    vWrd = [a.valloc(1) for _ in range(4)]
    vXrd = [a.valloc(1) for _ in range(4)]
    vXh = a.valloc(1); vXs = a.valloc(1); vKs = a.valloc(1); vXd = a.valloc(1); vWd = a.valloc(1)
    free1 = a.nv

    a.e("s_cmp_ge_u32 s2, 256")
    a.e(f"s_cbranch_scc1 {name}_end")
    load_kernargs(a)
    a.e(f"v_and_b32 {v(vL)}, 63, v0")
    a.e(f"v_lshrrev_b32 {v(t0)}, 6, v0")
    a.e(f"v_lshrrev_b32 {v(vH)}, 5, {v(vL)}")
    a.e(f"v_readfirstlane_b32 s{sWv}, {v(t0)}")
    a.e(f"v_and_b32 {v(vI)}, 31, {v(vL)}")
    a.e(f"v_lshlrev_b32 {v(vL16)}, 4, {v(vL)}")
    decode_wg(a, sRB, sHP, sT0, sT1)
    a.e(f"s_lshr_b32 s{sPG}, s{sHP}, 1")
    a.e(f"s_and_b32 s{sKIND}, s{sHP}, 1")
    a.e(f"s_mov_b32 s{sC}, {C_SCALE:#x}")
    a.e(f"s_lshl_b32 s{sXm}, s{sRB}, 17")
    a.e(f"s_sub_u32 s{sXm}, s{sXm}, 32768")
    a.e(f"s_cmp_eq_u32 s{sRB}, 0")
    a.e(f"s_cselect_b32 s{sXh}, 0, s{sXm}")
    a.e(f"s_cmp_lt_u32 s{sWv}, 3")
    a.e(f"s_mov_b32 s{sT0}, 3072")
    a.e(f"s_cselect_b32 s{sT2}, s{sT0}, 1024")
    a.e(f"s_lshl_b32 s{sStr16}, s{sT2}, 4")
    a.e(f"s_mov_b32 s{sWoff}, 0")
    a.e(f"s_lshl_b32 s{sT0}, s{sWv}, 10")
    a.e(f"s_cmp_lt_u32 s{sWv}, 3")
    a.e(f"s_cselect_b32 s{sT0}, s{sT0}, 0")
    a.e(f"s_lshl_b32 s{sT1}, s{sHP}, 6")
    a.e(f"s_add_u32 s{sT3}, s{sT0}, s{sT1}")
    a.e(f"v_lshrrev_b32 {v(t0)}, 2, {v(vL)}")
    a.e(f"v_mul_lo_u32 {v(vWd)}, {v(t0)}, s{sT2}")
    a.e(f"v_and_b32 {v(t0)}, 3, {v(vL)}")
    a.e(f"v_lshlrev_b32 {v(t0)}, 4, {v(t0)}")
    a.e(f"v_add3_u32 {v(vWd)}, {v(vWd)}, {v(t0)}, s{sT3}")
    a.e(f"s_and_b32 s{sT0}, s{sWv}, 1")
    a.e(f"s_lshl_b32 s{sT0}, s{sT0}, 2")
    a.e(f"v_lshrrev_b32 {v(t0)}, 4, {v(vL)}")
    a.e(f"v_or_b32 {v(t0)}, s{sT0}, {v(t0)}")
    a.e(f"v_and_b32 {v(t1)}, 7, {v(vL)}")
    a.e(f"v_xor_b32 {v(t0)}, {v(t0)}, {v(t1)}")
    a.e(f"v_lshlrev_b32 {v(t0)}, 4, {v(t0)}")
    a.e(f"v_lshrrev_b32 {v(t1)}, 3, {v(vL)}")
    a.e(f"s_lshl_b32 s{sT0}, s{sWv}, 3")
    a.e(f"v_add_u32 {v(t1)}, s{sT0}, {v(t1)}")
    a.e(f"v_lshl_add_u32 {v(vXd)}, {v(t1)}, 10, {v(t0)}")
    a.e("s_waitcnt lgkmcnt(0)")
    srd(a, sX, P_X, 2048*1024)
    a.e(f"s_cmp_lt_u32 s{sWv}, 3")
    a.e(f"s_cselect_b32 s{sW}, s{P_WQKV}, s{P_WQ}")
    a.e(f"s_cselect_b32 s{sW+1}, s{P_WQKV+1}, s{P_WQ+1}")
    a.e(f"s_mov_b32 s{sT0}, {512*3072}")
    a.e(f"s_cselect_b32 s{sW+2}, s{sT0}, {512*1024}")
    a.e(f"s_mov_b32 s{sW+3}, 0x00020000")
    a.e(f"s_cmp_eq_u32 s{sKIND}, 0")
    a.e(f"s_cselect_b32 s{sKW}, s{P_WK}, s{P_WV}")
    a.e(f"s_cselect_b32 s{sKW+1}, s{P_WK+1}, s{P_WV+1}")
    a.e(f"s_mov_b32 s{sKW+2}, 16384")
    a.e(f"s_mov_b32 s{sKW+3}, 0x00020000")
    srd(a, sGW, P_GW, 1024)
    srd(a, sWS, P_WS, WS_SIZE)
    a.e(f"s_lshl_b32 s{sT0}, s{sWv}, 10")
    for n in range(4):
        a.e(f"s_add_u32 m0, s{sT0}, {KWB + n*4096}")
        a.e(f"s_add_u32 s{sT1}, s{sT0}, {n*4096}")
        a.vm(f"buffer_load_dwordx4 {v(vL16)}, s[{sKW}:{sKW+3}], s{sT1} offen lds", "kw")
    a.e(f"s_lshl_b32 s{sM0X}, s{sWv}, 10")
    a.e(f"s_lshl_b32 s{sM0W}, s{sWv}, 12")
    def dma_ops(c):
        st = c & 3
        ops = []
        for n in range(5):
            def f(n=n):
                a.e(f"s_add_u32 m0, s{sM0X}, {st*XST + n*4096}")
                if n == 0:
                    a.e(f"s_add_u32 s{sT1}, s{sXh}, {c*128}")
                else:
                    a.e(f"s_add_u32 s{sT1}, s{sXm}, {n*32768 + c*128}")
                a.vm(f"buffer_load_dwordx4 {v(vXd)}, s[{sX}:{sX+3}], s{sT1} offen lds", f"ch{c}")
            ops.append(f)
        for n in range(4):
            def f(n=n):
                a.e(f"s_add_u32 m0, s{sM0W}, {WB + st*WST + n*1024}")
                a.e("s_nop 0")
                a.vm(f"buffer_load_dwordx4 {v(vWd)}, s[{sW}:{sW+3}], s{sWoff} offen lds", f"ch{c}")
                a.e(f"s_add_u32 s{sWoff}, s{sWoff}, s{sStr16}")
            ops.append(f)
        return ops
    for f in dma_ops(0): f()
    a.e(f"v_lshrrev_b32 {v(t0)}, 4, {v(vL)}")
    a.e(f"v_lshlrev_b32 {v(t0)}, 3, {v(t0)}")
    a.e(f"s_lshl_b32 s{sT0}, s{sWv}, 5")
    a.e(f"v_add_u32 {v(t0)}, s{sT0}, {v(t0)}")
    a.e(f"v_and_b32 {v(t1)}, 15, {v(vL)}")
    a.e(f"v_lshlrev_b32 {v(t1)}, 16, {v(t1)}")
    a.e(f"v_add_u32 {v(t0)}, {v(t0)}, {v(t1)}")
    for c in range(8):
        a.vm(f"buffer_load_dwordx2 {v(GW+2*c,2)}, {v(t0)}, s[{sGW}:{sGW+3}], 0 offen offset:{c*128}", "gw")
    for c in (1, 2, 3):
        for f in dma_ops(c): f()
    a.e(f"s_lshl_b32 s{sT0}, s2, 2")
    a.e(f"s_add_u32 s{sT0}, s{sT0}, s{sWv}")
    a.e(f"s_lshl_b32 s{sFo}, s{sT0}, 10")
    a.e(f"s_cmp_lt_u32 s{sT0}, 512")
    a.e(f"s_cselect_b32 s{sWO}, s{P_AWO}, s{P_BWO}")
    a.e(f"s_cselect_b32 s{sWO+1}, s{P_AWO+1}, s{P_BWO+1}")
    a.e(f"s_mov_b32 s{sWO+2}, {512*1024}")
    a.e(f"s_mov_b32 s{sWO+3}, 0x00020000")
    a.e(f"s_lshr_b32 s{sT1}, s{sT0}, 4")
    a.e(f"s_and_b32 s{sT1}, s{sT1}, 31")
    a.e(f"s_lshl_b32 s{sT1}, s{sT1}, 14")
    a.e(f"s_and_b32 s{sT0}, s{sT0}, 15")
    a.e(f"s_lshl_b32 s{sT0}, s{sT0}, 6")
    a.e(f"s_add_u32 s{sT0}, s{sT0}, s{sT1}")
    a.e(f"s_add_u32 s{sT1}, s{sT0}, 8192")
    a.e(f"v_lshlrev_b32 {v(t0)}, 12, {v(vH)}")
    a.e(f"v_lshl_add_u32 {v(t0)}, {v(vI)}, 1, {v(t0)}")
    for i in range(8):
        so = sT0 if i < 4 else sT1
        op = "buffer_load_short_d16" if i % 2 == 0 else "buffer_load_short_d16_hi"
        a.vm(f"{op} {v(WO+i)}, {v(t0)}, s[{sWO}:{sWO+3}], s{so} offen offset:{(i&3)*1024}", "wo")
    a.e(f"v_lshlrev_b32 {v(t0)}, 9, {v(vH)}")
    a.e(f"v_bfe_u32 {v(t1)}, {v(vL)}, 2, 2")
    a.e(f"v_lshl_add_u32 {v(t0)}, {v(t1)}, 6, {v(t0)}")
    a.e(f"v_bfe_u32 {v(t1)}, {v(vL)}, 4, 1")
    a.e(f"v_lshl_add_u32 {v(t0)}, {v(t1)}, 5, {v(t0)}")
    a.e(f"v_and_b32 {v(t1)}, 3, {v(vL)}")
    a.e(f"v_lshl_add_u32 {v(t0)}, {v(t1)}, 3, {v(t0)}")
    for p in range(4):
        a.e(f"s_add_u32 s{sT0}, s{sWv}, {p}")
        a.e(f"s_and_b32 s{sT0}, s{sT0}, 3")
        a.e(f"s_lshl_b32 s{sT1}, s{sT0}, 10")
        a.e(f"s_add_u32 s{sT1}, s{sT1}, {WB}")
        a.e(f"v_add_u32 {v(vWrd[p])}, s{sT1}, {v(t0)}")
        a.e(f"s_lshl_b32 s{sT0}, s{sT0}, 1")
        a.e(f"v_add_u32 {v(t1)}, s{sT0}, {v(vH)}")
        a.e(f"v_bfe_u32 {v(t2)}, {v(vI)}, 1, 3")
        a.e(f"v_xor_b32 {v(t1)}, {v(t1)}, {v(t2)}")
        a.e(f"v_lshlrev_b32 {v(t1)}, 4, {v(t1)}")
        a.e(f"v_lshl_add_u32 {v(t1)}, {v(vI)}, 7, {v(t1)}")
        if p == 0:
            a.e(f"v_mov_b32 {v(vXh)}, {v(t1)}")
        a.e(f"s_lshl_b32 s{sT1}, s{sWv}, 12")
        a.e(f"s_add_u32 s{sT1}, s{sT1}, 4096")
        a.e(f"v_add_u32 {v(vXrd[p])}, s{sT1}, {v(t1)}")
    a.e(f"v_and_b32 {v(t0)}, 15, {v(vL)}")
    a.e(f"v_lshrrev_b32 {v(t1)}, 1, {v(t0)}")
    a.e(f"s_lshl_b32 s{sT0}, s{sWv}, 1")
    a.e(f"v_add_u32 {v(t2)}, s{sT0}, {v(vH)}")
    a.e(f"v_xor_b32 {v(t1)}, {v(t1)}, {v(t2)}")
    a.e(f"v_lshlrev_b32 {v(t1)}, 4, {v(t1)}")
    a.e(f"v_lshl_add_u32 {v(t1)}, {v(t0)}, 7, {v(t1)}")
    a.e(f"v_bfe_u32 {v(t2)}, {v(vL)}, 4, 1")
    a.e(f"v_lshl_add_u32 {v(t1)}, {v(t2)}, 3, {v(t1)}")
    a.e(f"s_lshl_b32 s{sT0}, s{sPG}, 11")
    a.e(f"s_add_u32 s{sT0}, s{sT0}, 4096")
    a.e(f"v_add_u32 {v(vXs)}, s{sT0}, {v(t1)}")
    a.e(f"s_lshl_b32 s{sT0}, s{sWv}, 9")
    a.e(f"s_add_u32 s{sT0}, s{sT0}, {KWB}")
    a.e(f"v_lshlrev_b32 {v(t0)}, 3, {v(vL)}")
    a.e(f"v_add_u32 {v(vKs)}, s{sT0}, {v(t0)}")
    a.e(f"v_lshlrev_b32 {v(t0)}, 2, {v(vH)}")
    a.e(f"v_sub_u32 {v(t0)}, {v(vI)}, {v(t0)}")
    a.e(f"s_or_b32 s{sT0}, s{sRB}, s{sWv}")
    a.e(f"s_cmp_eq_u32 s{sT0}, 0")
    a.e(f"s_cselect_b32 s{sT0}, 0x1020, 32")
    a.e(f"v_add_u32 {v(t1)}, s{sT0}, {v(t0)}")
    vNeg = J; vZero = J + 1; tt = Jg
    a.e(f"v_mov_b32 {v(vNeg)}, {NEG_BIG:#x}")
    a.e(f"v_mov_b32 {v(vZero)}, 0")
    regs = [(r, t0, M + r) for r in range(16)] + [(r, t1, M + 16 + (r - 8)) for r in range(8, 16)]
    for g0 in range(0, 24, 4):
        grp = regs[g0:g0+4]
        for k, (r, base, dst) in enumerate(grp):
            rc = (r & 3) + 8 * (r >> 2)
            a.e(f"v_subrev_u32 {v(tt+k)}, {rc}, {v(base)}")
            a.e(f"v_and_b32 {v(tt+k)}, 0xfffffff1, {v(tt+k)}")
            a.e(f"v_cmp_eq_u32 s[{72+2*k}:{73+2*k}], 0, {v(tt+k)}")
        a.e("s_nop 1")
        for k, (r, base, dst) in enumerate(grp):
            a.e(f"v_cndmask_b32 {v(dst)}, {v(vNeg)}, {v(vZero)}, s[{72+2*k}:{73+2*k}]")

    def reads(sn):
        c = sn >> 2; p = sn & 3; st = c & 3; se = sn & 1
        r = []
        r.append(lambda: a.lds(f"ds_read_b128 {v(XF[se],4)}, {v(vXrd[p])} offset:{st*XST}", f"X{sn}"))
        def wrd(t):
            r.append(lambda: a.lds(f"ds_read_b64_tr_b16 {v(WF[se][t],2)}, {v(vWrd[p])} offset:{st*WST + t*4096}", f"W{t}_{sn}"))
            r.append(lambda: a.lds(f"ds_read_b64_tr_b16 {v(WF[se][t]+2,2)}, {v(vWrd[p])} offset:{st*WST + t*4096 + 256}", f"W{t}_{sn}"))
        wrd(0); wrd(1)
        if p == 0:
            r.append(lambda: a.lds(f"ds_read_b128 {v(XH,4)}, {v(vXh)} offset:{st*XST}", f"XH{sn}"))
        wrd(2); wrd(3)
        if p == 0:
            r.append(lambda: a.lds(f"ds_read_b64 {v(SX,2)}, {v(vXs)} offset:{st*XST}", f"SX{sn}"))
            r.append(lambda: a.lds(f"ds_read_b64_tr_b16 {v(SW,2)}, {v(vKs)} offset:{c*2048}", f"SW{sn}"))
        return r
    def mfmas(sn):
        c = sn >> 2; p = sn & 3; se = sn & 1
        first = sn == 0
        def big(D, A, B, tags):
            def f():
                a.wait_lds(*tags)
                Cc = "0" if first else v(D, 16)
                a.e(f"v_mfma_f32_32x32x16_bf16 {v(D,16)}, {v(A,4)}, {v(B,4)}, {Cc}")
            return f
        def small(D, A, B, tags):
            def f():
                a.wait_lds(*tags)
                Cc = "0" if first else v(D, 4)
                a.e(f"v_mfma_f32_16x16x16_bf16 {v(D,4)}, {v(A,2)}, {v(B,2)}, {Cc}")
            return f
        X = XF[se]; W = WF[se]
        m = [big(Aq, W[0], X, (f"X{sn}", f"W0_{sn}")), big(Ak, W[1], X, (f"W1_{sn}",))]
        if p == 0: m.append(big(Hk, W[1], XH, (f"XH{sn}",)))
        m.append(big(Av, X, W[2], (f"W2_{sn}",)))
        if p == 0: m.append(big(Hv, XH, W[2], ()))
        m.append(big(AQ, W[3], X, (f"W3_{sn}",)))
        if p == 0:
            m.append(small(J, SW, SX, (f"SX{sn}", f"SW{sn}")))
            m.append(small(Jg, GW + 2*c, SX, ()))
        return m
    a.wait_vm("ch0", "gw")
    a.e("s_barrier")
    for f in reads(0): f()
    pending_dma = []
    for sn in range(32):
        c = sn >> 2; p = sn & 3
        ms = mfmas(sn)
        rd = reads(sn + 1) if sn < 31 else []
        nslots = len(ms)
        for k, mf in enumerate(ms):
            mf()
            if k == 0 and p == 3 and c < 7:
                a.wait_vm(f"ch{c+1}")
                a.e("s_barrier")
                if c >= 1 and c + 3 <= 7:
                    pending_dma = dma_ops(c + 3)
            n = (len(rd) + (nslots - k) - 1) // (nslots - k)
            for _ in range(n):
                rd.pop(0)()
            for _ in range(2):
                if pending_dma: pending_dma.pop(0)()
        assert not rd
    assert not pending_dma

    a.nv = free0
    Kf = a.valloc(8, 4); Vf = a.valloc(8, 4); Qf = a.valloc(8, 4); QB = a.valloc(8, 4); Vp = a.valloc(4, 4)
    P = a.valloc(24, 4); ONES = a.valloc(4, 4)
    vA = a.valloc(1); vB = a.valloc(1); mx = [a.valloc(1), a.valloc(1)]; mt = [a.valloc(1), a.valloc(1)]
    assert a.nv <= free1 + 8, (a.nv, free1)
    Kp = QB
    a.e("s_nop 15")
    for i in range(8):
        a.e(f"v_cvt_pk_bf16_f32 {v(Kf+i)}, {v(Ak+2*i)}, {v(Ak+2*i+1)}")
    for i in range(8):
        a.e(f"v_cvt_pk_bf16_f32 {v(Vf+i)}, {v(Av+2*i)}, {v(Av+2*i+1)}")
    a.e(f"s_mul_i32 s{sT0}, s{sWv}, 3072")
    a.e(f"v_add_u32 {v(vA)}, s{sT0}, {v(vL16)}")
    a.lds(f"ds_write_b128 {v(vA)}, {v(Kf,4)}")
    a.lds(f"ds_write_b128 {v(vA)}, {v(Kf+4,4)} offset:1024")
    a.lds(f"ds_write_b128 {v(vA)}, {v(Vf+4,4)} offset:2048")
    a.e(f"s_mul_i32 s{sT0}, s{sWv}, 6144")
    a.e(f"s_add_u32 s{sT0}, s{sT0}, {WB}")
    a.e(f"v_add_u32 {v(vB)}, s{sT0}, {v(vL16)}")
    for i in range(4):
        a.lds(f"ds_write_b128 {v(vB)}, {v(Hk+4*i,4)} offset:{i*1024}")
    for i in range(2):
        a.lds(f"ds_write_b128 {v(vB)}, {v(Hv+8+4*i,4)} offset:{4096+i*1024}")
    a.e(f"s_lshl_b32 s{sT0}, s{sWv}, 11")
    a.e(f"v_add_u32 {v(vB)}, s{sT0}, {v(vL16)}")
    a.lds(f"ds_write_b128 {v(vB)}, {v(J,4)} offset:12288")
    a.lds(f"ds_write_b128 {v(vB)}, {v(Jg,4)} offset:{12288+1024}")
    for i in range(16):
        a.e(f"v_mul_f32 {v(AQ+i)}, s{sC}, {v(AQ+i)}")
    for i in range(8):
        a.e(f"v_cvt_pk_bf16_f32 {v(QB+i)}, {v(AQ+2*i)}, {v(AQ+2*i+1)}")
    a.e(f"s_lshl_b32 s{sT0}, s{sRB}, 2")
    a.e(f"s_add_u32 s{sT0}, s{sT0}, s{sWv}")
    a.e(f"s_lshl_b32 s{sT0}, s{sT0}, 5")
    a.e(f"s_lshl_b32 s{sT1}, s{sHP}, 1")
    a.e(f"s_add_u32 s{sT0}, s{sT0}, s{sT1}")
    a.e(f"s_lshl_b32 s{sT2}, s{sT0}, 10")
    if WS_QF: a.e(f"s_add_u32 s{sT2}, s{sT2}, {WS_QF}")
    a.vm(f"buffer_store_dwordx4 {v(QB,4)}, {v(vL16)}, s[{sWS}:{sWS+3}], s{sT2} offen")
    a.vm(f"buffer_store_dwordx4 {v(QB+4,4)}, {v(vL16)}, s[{sWS}:{sWS+3}], s{sT2} offen offset:1024")
    a.e(f"s_add_u32 s{sT2}, s{sT2}, {WS_OF - WS_QF}")
    for i in range(16):
        a.e(f"v_mul_f32 {v(Aq+i)}, s{sC}, {v(Aq+i)}")
    for i in range(8):
        a.e(f"v_cvt_pk_bf16_f32 {v(Qf+i)}, {v(Aq+2*i)}, {v(Aq+2*i+1)}")
    for i in range(4):
        a.e(f"v_or_b32 {v(WO+i)}, {v(WO+2*i)}, {v(WO+2*i+1)}") if i else a.e(f"v_or_b32 {v(WO)}, {v(WO)}, {v(WO+1)}")
    a.e(f"s_add_u32 s{sFo}, s{sFo}, {WS_WF}")
    a.vm(f"buffer_store_dwordx4 {v(WO,4)}, {v(vL16)}, s[{sWS}:{sWS+3}], s{sFo} offen")
    for i in range(4):
        a.e(f"v_mov_b32 {v(ONES+i)}, 0x3f803f80")
    a.wait_lds_all()
    a.e("s_barrier")
    a.e(f"s_cmp_eq_u32 s{sWv}, 0")
    a.e(f"s_cbranch_scc1 {name}_halo")
    a.e(f"v_subrev_u32 {v(vA)}, 3072, {v(vA)}")
    a.e(f"ds_read_b128 {v(Kp,4)}, {v(vA)}")
    a.e(f"ds_read_b128 {v(Kp+4,4)}, {v(vA)} offset:1024")
    a.e(f"ds_read_b128 {v(Vp,4)}, {v(vA)} offset:2048")
    a.e("s_waitcnt lgkmcnt(0)")
    a.e(f"s_branch {name}_attn")
    a.label(f"{name}_halo")
    a.e(f"v_add_u32 {v(vB)}, {WB}, {v(vL16)}")
    for w in (1, 2, 3):
        for i in range(6):
            a.e(f"ds_read_b128 {v(P+4*i,4)}, {v(vB)} offset:{w*6144 + i*1024}")
        for i in range(6):
            a.e(f"s_waitcnt lgkmcnt({5-i})")
            dst = Hk + 4*i if i < 4 else Hv + 8 + 4*(i-4)
            for k in range(4):
                a.e(f"v_add_f32 {v(dst+k)}, {v(dst+k)}, {v(P+4*i+k)}")
    for i in range(8):
        a.e(f"v_cvt_pk_bf16_f32 {v(Kp+i)}, {v(Hk+2*i)}, {v(Hk+2*i+1)}")
    for i in range(4):
        a.e(f"v_cvt_pk_bf16_f32 {v(Vp+i)}, {v(Hv+8+2*i)}, {v(Hv+8+2*i+1)}")
    a.e("s_nop 1")
    a.label(f"{name}_attn")
    Sc = [Aq, Av]; Sp = [Ak, AQ]
    for hd in range(2):
        a.e(f"v_mfma_f32_32x32x16_bf16 {v(Sc[hd],16)}, {v(Kf+4*hd,4)}, {v(Qf+4*hd,4)}, {v(M,16)}")
        a.e(f"v_mfma_f32_32x32x16_bf16 {v(Sp[hd],16)}, {v(Kp+4*hd,4)}, {v(Qf+4*hd,4)}, {v(M+8,16)}")
    a.e("s_nop 9")
    for hd in range(2):
        vals = [Sc[hd] + r for r in range(16)] + [Sp[hd] + r for r in range(8, 16)]
        if hd == 1: a.e("s_nop 3")
        a.e(f"v_max3_f32 {v(mx[hd])}, {v(vals[0])}, {v(vals[1])}, {v(vals[2])}")
        k = 3
        while k < 24:
            if k + 1 < 24:
                a.e(f"v_max3_f32 {v(mx[hd])}, {v(mx[hd])}, {v(vals[k])}, {v(vals[k+1])}"); k += 2
            else:
                a.e(f"v_max_f32 {v(mx[hd])}, {v(mx[hd])}, {v(vals[k])}"); k += 1
        a.e(f"v_mov_b32 {v(mt[hd])}, {v(mx[hd])}")
        a.e("s_nop 1")
        a.e(f"v_permlane32_swap_b32 {v(mx[hd])}, {v(mt[hd])}")
        a.e("s_nop 1")
        a.e(f"v_max_f32 {v(mx[hd])}, {v(mx[hd])}, {v(mt[hd])}")
        for r in vals:
            a.e(f"v_sub_f32 {v(r)}, {v(r)}, {v(mx[hd])}")
        for r in vals:
            a.e(f"v_exp_f32 {v(r)}, {v(r)}")
        a.e("s_nop 0")
        Ph = P + 12*hd
        for i in range(12):
            a.e(f"v_cvt_pk_bf16_f32 {v(Ph+i)}, {v(vals[2*i])}, {v(vals[2*i+1])}")
        a.e("s_nop 1")
        O = Sc[hd]; Lr = Sp[hd]
        a.e(f"v_mfma_f32_32x32x16_bf16 {v(O,16)}, {v(Vf,4)}, {v(Ph,4)}, 0")
        a.e(f"v_mfma_f32_32x32x16_bf16 {v(Lr,16)}, {v(ONES,4)}, {v(Ph,4)}, 0")
        a.e(f"v_mfma_f32_32x32x16_bf16 {v(O,16)}, {v(Vf+4,4)}, {v(Ph+4,4)}, {v(O,16)}")
        a.e(f"v_mfma_f32_32x32x16_bf16 {v(Lr,16)}, {v(ONES,4)}, {v(Ph+4,4)}, {v(Lr,16)}")
        a.e(f"v_mfma_f32_32x32x16_bf16 {v(O,16)}, {v(Vp,4)}, {v(Ph+8,4)}, {v(O,16)}")
        a.e(f"v_mfma_f32_32x32x16_bf16 {v(Lr,16)}, {v(ONES,4)}, {v(Ph+8,4)}, {v(Lr,16)}")
    for hd in range(2):
        O = Sc[hd]; Lr = Sp[hd]
        if hd == 1: a.e("s_nop 15")
        a.e(f"v_rcp_f32 {v(mx[hd])}, {v(Lr)}")
        a.e("s_nop 0")
        for j in range(8):
            a.e(f"v_mul_f32 {v(O+8*hd+j)}, {v(O+8*hd+j)}, {v(mx[hd])}")
        for i in range(4):
            a.e(f"v_cvt_pk_bf16_f32 {v(Kf+4*hd+i)}, {v(O+8*hd+2*i)}, {v(O+8*hd+2*i+1)}")
        a.e(f"buffer_store_dwordx4 {v(Kf+4*hd,4)}, {v(vL16)}, s[{sWS}:{sWS+3}], s{sT2} offen offset:{hd*1024}")
    a.e(f"s_cmp_lg_u32 s{sWv}, 3")
    a.e(f"s_cbranch_scc1 {name}_end")
    for w in range(3):
        a.e(f"ds_read_b128 {v(P+8*w,4)}, {v(vL16)} offset:{12288 + w*2048}")
        a.e(f"ds_read_b128 {v(P+8*w+4,4)}, {v(vL16)} offset:{12288 + w*2048 + 1024}")
    a.e("s_waitcnt lgkmcnt(0)")
    for w in range(3):
        for k in range(4):
            a.e(f"v_add_f32 {v(J+k)}, {v(J+k)}, {v(P+8*w+k)}")
        a.e(f"v_add_f32 {v(Jg)}, {v(Jg)}, {v(P+8*w+4)}")
    a.e(f"v_cvt_pk_bf16_f32 {v(Vf)}, {v(J)}, {v(J+1)}")
    a.e(f"v_cvt_pk_bf16_f32 {v(Vf+1)}, {v(J+2)}, {v(J+3)}")
    a.e(f"s_lshl_b32 s{sT0}, s{sRB}, 2")
    a.e(f"s_lshr_b32 s{sT1}, s{sPG}, 1")
    a.e(f"s_add_u32 s{sT0}, s{sT0}, s{sT1}")
    a.e(f"s_lshl_b32 s{sT0}, s{sT0}, 11")
    a.e(f"s_add_u32 s{sT0}, s{sT0}, {WS_KV}")
    a.e(f"s_and_b32 s{sT1}, s{sPG}, 1")
    a.e(f"s_lshl_b32 s{sT3}, s{sRB}, 3")
    a.e(f"s_add_u32 s{sT3}, s{sT3}, s{sPG}")
    a.e(f"v_and_b32 {v(t0)}, 15, {v(vL)}")
    a.e(f"v_bfe_u32 {v(t1)}, {v(vL)}, 4, 1")
    a.e(f"s_cmp_eq_u32 s{sKIND}, 0")
    a.e(f"s_cbranch_scc0 {name}_vkind")
    a.e(f"s_lshl_b32 s{sT1}, s{sT1}, 8")
    a.e(f"s_add_u32 s{sT0}, s{sT0}, s{sT1}")
    a.e(f"v_lshlrev_b32 {v(t2)}, 4, {v(t0)}")
    a.e(f"v_lshl_add_u32 {v(t2)}, {v(t1)}, 9, {v(t2)}")
    a.e(f"v_lshl_add_u32 {v(t2)}, {v(vH)}, 3, {v(t2)}")
    a.e(f"buffer_store_dwordx2 {v(Vf,2)}, {v(t2)}, s[{sWS}:{sWS+3}], s{sT0} offen")
    a.e(f"v_mul_f32 {v(t2)}, {v(J)}, {v(J)}")
    for k in range(1, 4):
        a.e(f"v_fmac_f32 {v(t2)}, {v(J+k)}, {v(J+k)}")
    a.e(f"v_mov_b32 {v(t3)}, {v(t2)}")
    a.e("s_nop 1")
    a.e(f"v_permlane16_swap_b32 {v(t2)}, {v(t3)}")
    a.e("s_nop 1")
    a.e(f"v_add_f32 {v(t2)}, {v(t2)}, {v(t3)}")
    a.e(f"v_mov_b32 {v(t3)}, {v(t2)}")
    a.e("s_nop 1")
    a.e(f"v_permlane32_swap_b32 {v(t2)}, {v(t3)}")
    a.e("s_nop 1")
    a.e(f"v_add_f32 {v(t2)}, {v(t2)}, {v(t3)}")
    def rowmax(r):
        for sh in (8, 4, 2, 1):
            a.e("s_nop 1")
            a.e(f"v_max_f32_dpp {v(r)}, {v(r)}, {v(r)} row_ror:{sh} row_mask:0xf bank_mask:0xf")
    rowmax(t2)
    a.e(f"v_mul_f32 {v(Jg)}, {(LOG2E ^ 0x80000000):#x}, {v(Jg)}")
    a.e(f"v_exp_f32 {v(Jg)}, {v(Jg)}")
    a.e("s_nop 0")
    a.e(f"v_add_f32 {v(Jg)}, 1.0, {v(Jg)}")
    a.e(f"v_rcp_f32 {v(Jg)}, {v(Jg)}")
    a.e(f"v_lshrrev_b32 {v(t3)}, 4, {v(vL)}")
    a.e(f"v_lshlrev_b32 {v(t3)}, 24, {v(t3)}")
    a.e(f"v_lshl_add_u32 {v(t3)}, {v(t0)}, 2, {v(t3)}")
    a.e(f"s_lshl_b32 s{sT1}, s{sT3}, 6")
    a.e(f"s_add_u32 s{sT1}, s{sT1}, {WS_G}")
    a.e(f"buffer_store_dword {v(Jg)}, {v(t3)}, s[{sWS}:{sWS+3}], s{sT1} offen")
    a.e(f"s_lshl_b32 s{sT1}, s{sT3}, 2")
    a.e(f"s_add_u32 s{sT1}, s{sT1}, {WS_KN}")
    a.e(f"s_branch {name}_nstore")
    a.label(f"{name}_vkind")
    a.e(f"s_lshl_b32 s{sT1}, s{sT1}, 9")
    a.e(f"s_add_u32 s{sT0}, s{sT0}, s{sT1}")
    a.e(f"s_add_u32 s{sT0}, s{sT0}, 1024")
    a.e(f"v_bfe_u32 {v(t2)}, {v(t0)}, 2, 1")
    a.e(f"v_lshlrev_b32 {v(t2)}, 8, {v(t2)}")
    a.e(f"v_lshrrev_b32 {v(t3)}, 4, {v(vL)}")
    a.e(f"v_lshl_add_u32 {v(t2)}, {v(t3)}, 6, {v(t2)}")
    a.e(f"v_and_b32 {v(t3)}, 3, {v(t0)}")
    a.e(f"v_lshl_add_u32 {v(t2)}, {v(t3)}, 1, {v(t2)}")
    a.e(f"v_lshrrev_b32 {v(t3)}, 3, {v(t0)}")
    a.e(f"v_lshl_add_u32 {v(t2)}, {v(t3)}, 3, {v(t2)}")
    a.e(f"buffer_store_short {v(Vf)}, {v(t2)}, s[{sWS}:{sWS+3}], s{sT0} offen")
    a.e(f"buffer_store_short_d16_hi {v(Vf)}, {v(t2)}, s[{sWS}:{sWS+3}], s{sT0} offen offset:16")
    a.e(f"buffer_store_short {v(Vf+1)}, {v(t2)}, s[{sWS}:{sWS+3}], s{sT0} offen offset:32")
    a.e(f"buffer_store_short_d16_hi {v(Vf+1)}, {v(t2)}, s[{sWS}:{sWS+3}], s{sT0} offen offset:48")
    a.e(f"v_max_f32 {v(t2)}, abs({v(J)}), abs({v(J+1)})")
    a.e(f"v_max3_f32 {v(t2)}, {v(t2)}, abs({v(J+2)}), abs({v(J+3)})")
    a.e(f"v_mov_b32 {v(t3)}, {v(t2)}")
    a.e("s_nop 1")
    a.e(f"v_permlane16_swap_b32 {v(t2)}, {v(t3)}")
    a.e("s_nop 1")
    a.e(f"v_max_f32 {v(t2)}, {v(t2)}, {v(t3)}")
    a.e(f"v_mov_b32 {v(t3)}, {v(t2)}")
    a.e("s_nop 1")
    a.e(f"v_permlane32_swap_b32 {v(t2)}, {v(t3)}")
    a.e("s_nop 1")
    a.e(f"v_max_f32 {v(t2)}, {v(t2)}, {v(t3)}")
    rowmax(t2)
    a.e(f"s_lshl_b32 s{sT1}, s{sT3}, 2")
    a.e(f"s_add_u32 s{sT1}, s{sT1}, {WS_VN}")
    a.label(f"{name}_nstore")
    a.e(f"v_lshlrev_b32 {v(t3)}, 24, {v(vL)}")
    a.e(f"buffer_store_dword {v(t2)}, {v(t3)}, s[{sWS}:{sWS+3}], s{sT1} offen")
    a.label(f"{name}_end")
    a.e("s_endpgm")
    return a.text(), a.vmax
```

```python
from dsl import *
from gen_k1 import *

K2_LDS = 135168
T_SAFE = 64.0
def gen_k2(name):
    a = Asm()
    sWS = 8
    sWv = 3
    sRB, sHP = 32, 33
    sT0, sT1, sT2, sT3 = 40, 41, 42, 43
    sEXV = 36
    sTile = 38
    sCnt = 39
    a.valloc(1)
    vL = a.valloc(1); vL16 = a.valloc(1)
    t0 = a.valloc(1); t1 = a.valloc(1); t2 = a.valloc(1); t3 = a.valloc(1)
    vKa = a.valloc(1); vVa = a.valloc(1)
    vM = a.valloc(1)
    Q = a.valloc(4, 4)
    Cb = a.valloc(16, 4)
    S = [a.valloc(16, 4), a.valloc(16, 4)]
    P = a.valloc(8, 4)
    O = a.valloc(16, 4)
    KF = [a.valloc(4, 4), a.valloc(4, 4)]
    VF = [a.valloc(8, 4), a.valloc(8, 4)]
    NR = a.valloc(4, 4)

    a.e("s_cmp_ge_u32 s2, 256")
    a.e(f"s_cbranch_scc1 {name}_end")
    a.e(f"s_load_dwordx2 s[{P_WS}:{P_WS+1}], s[0:1], 88")
    a.e(f"v_and_b32 {v(vL)}, 63, v0")
    a.e(f"v_lshrrev_b32 {v(t0)}, 6, v0")
    a.e(f"v_lshlrev_b32 {v(vL16)}, 4, {v(vL)}")
    a.e(f"v_readfirstlane_b32 s{sWv}, {v(t0)}")
    decode_wg(a, sRB, sHP, sT0, sT1)
    a.e(f"s_lshl_b32 s{sT0}, s{sRB}, 2")
    a.e(f"s_lshr_b32 s{sT1}, s{sWv}, 1")
    a.e(f"s_add_u32 s{sT0}, s{sT0}, s{sT1}")
    a.e(f"s_lshl_b32 s{sT0}, s{sT0}, 5")
    a.e(f"s_lshl_b32 s{sT1}, s{sHP}, 1")
    a.e(f"s_add_u32 s{sT0}, s{sT0}, s{sT1}")
    a.e(f"s_and_b32 s{sT1}, s{sWv}, 1")
    a.e(f"s_add_u32 s{sT0}, s{sT0}, s{sT1}")
    a.e(f"s_lshl_b32 s{sTile}, s{sT0}, 10")
    a.e(f"s_mov_b32 s{sEXV}, 0x0000ffff")
    a.e(f"s_mov_b32 s{sEXV+1}, 0x0000ffff")
    a.e(f"s_lshl_b32 s{sT2}, s{sWv}, 10")
    a.e("s_waitcnt lgkmcnt(0)")
    srd(a, sWS, P_WS, WS_SIZE)
    def dma(i, tag):
        a.e(f"s_add_u32 m0, s{sT2}, {i*8192}")
        a.e(f"s_add_u32 s{sT1}, s{sT2}, {WS_KV + i*8192}")
        a.vm(f"buffer_load_dwordx4 {v(vL16)}, s[{sWS}:{sWS+3}], s{sT1} offen lds", tag)
    a.vm(f"buffer_load_dwordx4 {v(Q,4)}, {v(vL16)}, s[{sWS}:{sWS+3}], s{sTile} offen" + (f" offset:{WS_QF}" if WS_QF else ""), "q")
    for i in range(3): dma(i, "p1")
    a.e(f"v_lshlrev_b32 {v(t0)}, 3, {v(vL)}")
    a.e(f"s_mov_b32 s{sT0}, {WS_KN}")
    a.vm(f"buffer_load_dwordx2 {v(NR,2)}, {v(t0)}, s[{sWS}:{sWS+3}], s{sT0} offen", "nr")
    a.vm(f"buffer_load_dwordx2 {v(NR+2,2)}, {v(t0)}, s[{sWS}:{sWS+3}], s{sT0} offen offset:{WS_VN-WS_KN}", "nr")
    for i in range(3, 16): dma(i, "p2")
    a.e(f"v_mov_b32 {v(vKa)}, {v(vL16)}")
    a.e(f"v_lshrrev_b32 {v(t0)}, 5, {v(vL)}")
    a.e(f"v_lshlrev_b32 {v(t0)}, 8, {v(t0)}")
    a.e(f"v_and_b32 {v(t1)}, 15, {v(vL)}")
    a.e(f"v_lshl_add_u32 {v(vVa)}, {v(t1)}, 4, {v(t0)}")
    a.e(f"v_add_u32 {v(vVa)}, 1024, {v(vVa)}")
    a.e(f"v_and_b32 {v(t0)}, 27, {v(vL)}")
    a.e(f"v_cmp_eq_u32 vcc, 16, {v(t0)}")
    a.e(f"v_mov_b32 {v(t1)}, 0x3f803f80")
    a.e(f"v_mov_b32 {v(t2)}, 0")
    a.e(f"v_cndmask_b32 {v(t0)}, {v(t2)}, {v(t1)}, vcc")
    for b in range(2):
        for i in range(8):
            a.e(f"v_mov_b32 {v(VF[b]+i)}, {v(t0)}")
    for i in range(16):
        a.e(f"v_mov_b32 {v(O+i)}, 0")
    a.wait_vm("q")
    a.e(f"v_mov_b32 {v(t3)}, 0")
    for i in range(4):
        a.e(f"v_dot2_f32_bf16 {v(t3)}, {v(Q+i)}, {v(Q+i)}, {v(t3)}")
        a.e("s_nop 3")
    a.e(f"v_mov_b32 {v(t2)}, {v(t3)}")
    a.e("s_nop 1")
    a.e(f"v_permlane32_swap_b32 {v(t3)}, {v(t2)}")
    a.e("s_nop 1")
    a.e(f"v_add_f32 {v(t3)}, {v(t3)}, {v(t2)}")
    a.wait_vm("nr")
    a.e(f"v_max_f32 {v(NR)}, {v(NR)}, {v(NR+1)}")
    a.e(f"v_max_f32 {v(NR+2)}, {v(NR+2)}, {v(NR+3)}")
    for r, tmp in ((NR, NR+1), (NR+2, NR+3)):
        a.e(f"v_mov_b32 {v(tmp)}, {v(r)}")
        a.e("s_nop 1")
        a.e(f"v_permlane16_swap_b32 {v(r)}, {v(tmp)}")
        a.e("s_nop 1")
        a.e(f"v_max_f32 {v(r)}, {v(r)}, {v(tmp)}")
        a.e(f"v_mov_b32 {v(tmp)}, {v(r)}")
        a.e("s_nop 1")
        a.e(f"v_permlane32_swap_b32 {v(r)}, {v(tmp)}")
        a.e("s_nop 1")
        a.e(f"v_max_f32 {v(r)}, {v(r)}, {v(tmp)}")
        for sh in (8, 4, 2, 1):
            a.e("s_nop 1")
            a.e(f"v_max_f32_dpp {v(r)}, {v(r)}, {v(r)} row_ror:{sh} row_mask:0xf bank_mask:0xf")
    a.e(f"v_mul_f32 {v(t3)}, {v(t3)}, {v(NR)}")
    a.e(f"v_mul_f32 {v(t3)}, {f2u(1.03):#x}, {v(t3)}")
    a.wait_vm("p1")
    a.e("s_barrier")
    a.lds(f"ds_read_b128 {v(KF[0],4)}, {v(vKa)}", "K0")
    a.lds(f"ds_read_b128 {v(KF[1],4)}, {v(vKa)} offset:2048", "K1")
    a.e(f"s_mov_b64 exec, s[{sEXV}:{sEXV+1}]")
    a.lds(f"ds_read_b128 {v(VF[0],4)}, {v(vVa)}", "V0")
    a.lds(f"ds_read_b128 {v(VF[0]+4,4)}, {v(vVa)} offset:512", "V0")
    a.e("s_mov_b64 exec, -1")
    a.wait_lds("K0")
    a.e(f"v_mfma_f32_32x32x16_bf16 {v(S[1],16)}, {v(KF[0],4)}, {v(Q,4)}, 0")
    a.e("s_nop 15")
    def tilemax(Sr, dst, tmp):
        a.e(f"v_max3_f32 {v(dst)}, {v(Sr)}, {v(Sr+1)}, {v(Sr+2)}")
        for k in range(3, 15, 2):
            a.e(f"v_max3_f32 {v(dst)}, {v(dst)}, {v(Sr+k)}, {v(Sr+k+1)}")
        a.e(f"v_max_f32 {v(dst)}, {v(dst)}, {v(Sr+15)}")
        a.e(f"v_mov_b32 {v(tmp)}, {v(dst)}")
        a.e("s_nop 1")
        a.e(f"v_permlane32_swap_b32 {v(dst)}, {v(tmp)}")
        a.e("s_nop 1")
        a.e(f"v_max_f32 {v(dst)}, {v(dst)}, {v(tmp)}")
    tilemax(S[1], vM, t0)
    for i in range(16):
        a.e(f"v_sub_f32 {v(Cb+i)}, 0, {v(vM)}")
    a.e(f"v_add_f32 {v(t0)}, {f2u(T_SAFE):#x}, {v(vM)}")
    a.e(f"v_mul_f32 {v(t1)}, {v(t0)}, {v(t0)}")
    a.e(f"v_cmp_le_f32 s[70:71], 0, {v(t0)}")
    a.e(f"v_cmp_le_f32 s[72:73], {v(t3)}, {v(t1)}")
    a.e(f"v_mov_b32 {v(t1)}, {f2u(2.0**40):#x}")
    a.e(f"v_cmp_le_f32 s[74:75], {v(NR+2)}, {v(t1)}")
    a.e("s_nop 3")
    a.e("s_and_b64 s[70:71], s[70:71], s[72:73]")
    a.e("s_and_b64 s[70:71], s[70:71], s[74:75]")
    a.e("s_cmp_eq_u64 s[70:71], -1")
    a.e(f"s_cbranch_scc0 {name}_slow")
    a.e(f"v_mfma_f32_32x32x16_bf16 {v(S[0],16)}, {v(KF[0],4)}, {v(Q,4)}, {v(Cb,16)}")
    a.e(f"s_mov_b32 s{sCnt}, 0")
    a.e("s_waitcnt lgkmcnt(0)")
    a.lds_q = []
    a.raw(".p2align 6")
    a.label(f"{name}_loop")
    UN = 8
    for u in range(UN):
        cur = u & 1; nxt = cur ^ 1
        off = u * 2048
        a.e(f"s_waitcnt lgkmcnt(2)") if True else None
        a.e(f"v_mfma_f32_32x32x16_bf16 {v(S[nxt],16)}, {v(KF[nxt],4)}, {v(Q,4)}, {v(Cb,16)}")
        a.e(f"ds_read_b128 {v(KF[cur],4)}, {v(vKa)} offset:{off + 4096}")
        for i in range(8):
            a.e(f"v_exp_f32 {v(S[cur]+i)}, {v(S[cur]+i)}")
        for i in range(4):
            a.e(f"v_cvt_pk_bf16_f32 {v(P+i)}, {v(S[cur]+2*i)}, {v(S[cur]+2*i+1)}")
        for i in range(8, 10):
            a.e(f"v_exp_f32 {v(S[cur]+i)}, {v(S[cur]+i)}")
        a.e(f"s_waitcnt lgkmcnt(1)")
        a.e(f"v_mfma_f32_32x32x16_bf16 {v(O,16)}, {v(VF[cur],4)}, {v(P,4)}, {v(O,16)}")
        a.e(f"s_mov_b64 exec, s[{sEXV}:{sEXV+1}]")
        a.e(f"ds_read_b128 {v(VF[nxt],4)}, {v(vVa)} offset:{off + 2048}")
        a.e(f"ds_read_b128 {v(VF[nxt]+4,4)}, {v(vVa)} offset:{off + 2048 + 512}")
        a.e("s_mov_b64 exec, -1")
        for i in range(10, 16):
            a.e(f"v_exp_f32 {v(S[cur]+i)}, {v(S[cur]+i)}")
        for i in range(4, 8):
            a.e(f"v_cvt_pk_bf16_f32 {v(P+i)}, {v(S[cur]+2*i)}, {v(S[cur]+2*i+1)}")
        if u == UN - 1:
            a.e(f"v_add_u32 {v(vKa)}, {UN*2048}, {v(vKa)}")
            a.e(f"v_add_u32 {v(vVa)}, {UN*2048}, {v(vVa)}")
        else:
            a.e("s_nop 1")
        a.e(f"v_mfma_f32_32x32x16_bf16 {v(O,16)}, {v(VF[cur]+4,4)}, {v(P+4,4)}, {v(O,16)}")
    a.e(f"s_cmp_lg_u32 s{sCnt}, 0")
    a.e(f"s_cbranch_scc1 {name}_nobar")
    a.e("s_waitcnt vmcnt(0)")
    a.e("s_barrier")
    a.label(f"{name}_nobar")
    a.e(f"s_add_u32 s{sCnt}, s{sCnt}, 1")
    a.e(f"s_cmp_lt_u32 s{sCnt}, {64//UN}")
    a.e(f"s_cbranch_scc1 {name}_loop")
    a.e(f"s_branch {name}_fin")
    a.label(f"{name}_slow")
    a.e("s_waitcnt vmcnt(0) lgkmcnt(0)")
    a.e("s_barrier")
    a.e(f"s_mov_b32 s{sCnt}, 0")
    a.label(f"{name}_sloop")
    a.e(f"ds_read_b128 {v(KF[0],4)}, {v(vKa)}")
    a.e(f"s_mov_b64 exec, s[{sEXV}:{sEXV+1}]")
    a.e(f"ds_read_b128 {v(VF[0],4)}, {v(vVa)}")
    a.e(f"ds_read_b128 {v(VF[0]+4,4)}, {v(vVa)} offset:512")
    a.e("s_mov_b64 exec, -1")
    a.e("s_waitcnt lgkmcnt(0)")
    a.e(f"v_mfma_f32_32x32x16_bf16 {v(S[0],16)}, {v(KF[0],4)}, {v(Q,4)}, 0")
    a.e("s_nop 15")
    tilemax(S[0], t1, t0)
    a.e(f"v_max_f32 {v(t1)}, {v(t1)}, {v(vM)}")
    a.e(f"v_sub_f32 {v(t2)}, {v(vM)}, {v(t1)}")
    a.e(f"v_exp_f32 {v(t2)}, {v(t2)}")
    a.e(f"v_mov_b32 {v(vM)}, {v(t1)}")
    for i in range(16):
        a.e(f"v_mul_f32 {v(O+i)}, {v(O+i)}, {v(t2)}")
    for i in range(16):
        a.e(f"v_sub_f32 {v(S[0]+i)}, {v(S[0]+i)}, {v(vM)}")
    for i in range(16):
        a.e(f"v_exp_f32 {v(S[0]+i)}, {v(S[0]+i)}")
    a.e("s_nop 0")
    for i in range(8):
        a.e(f"v_cvt_pk_bf16_f32 {v(P+i)}, {v(S[0]+2*i)}, {v(S[0]+2*i+1)}")
    a.e(f"v_add_u32 {v(vKa)}, 2048, {v(vKa)}")
    a.e(f"v_add_u32 {v(vVa)}, 2048, {v(vVa)}")
    a.e(f"v_mfma_f32_32x32x16_bf16 {v(O,16)}, {v(VF[0],4)}, {v(P,4)}, {v(O,16)}")
    a.e(f"v_mfma_f32_32x32x16_bf16 {v(O,16)}, {v(VF[0]+4,4)}, {v(P+4,4)}, {v(O,16)}")
    a.e("s_nop 15")
    a.e(f"s_add_u32 s{sCnt}, s{sCnt}, 1")
    a.e(f"s_cmp_lt_u32 s{sCnt}, 64")
    a.e(f"s_cbranch_scc1 {name}_sloop")
    a.label(f"{name}_fin")
    a.e("s_nop 15")
    a.e(f"v_rcp_f32 {v(t0)}, {v(O+8)}")
    a.e("s_nop 0")
    for j in range(8):
        a.e(f"v_mul_f32 {v(O+j)}, {v(O+j)}, {v(t0)}")
    for i in range(4):
        a.e(f"v_cvt_pk_bf16_f32 {v(P+i)}, {v(O+2*i)}, {v(O+2*i+1)}")
    a.e(f"s_add_u32 s{sTile}, s{sTile}, {WS_OF + 0x200000}")
    a.e(f"buffer_store_dwordx4 {v(P,4)}, {v(vL16)}, s[{sWS}:{sWS+3}], s{sTile} offen")
    a.label(f"{name}_end")
    a.e("s_endpgm")
    return a.text(), a.vmax
```

```python
from dsl import *
from gen_k1 import *

RS = 272
K3_LDS = 4 * 64 * RS
def gen_k3(name):
    a = Asm()
    sWS, sOUT = 8, 12
    sWv = 3
    sPB, sNB = 32, 33
    sT0, sT1, sT2, sT3 = 40, 41, 42, 43
    sO0, sO1, sW0 = 34, 35, 36
    a.valloc(1)
    vL = a.valloc(1); vL16 = a.valloc(1); t0 = a.valloc(1); t1 = a.valloc(1); t2 = a.valloc(1); vG = a.valloc(2, 2)
    ACC = [[a.valloc(16, 4) for _ in range(2)] for _ in range(2)]
    NB = 11
    BUF = [a.valloc(16, 4) for _ in range(NB)]
    a.e("s_cmp_ge_u32 s2, 256")
    a.e(f"s_cbranch_scc1 {name}_end")
    a.e(f"s_load_dwordx2 s[{P_WS}:{P_WS+1}], s[0:1], 88")
    a.e(f"s_load_dwordx2 s[{P_OUT}:{P_OUT+1}], s[0:1], 72")
    a.e(f"v_and_b32 {v(vL)}, 63, v0")
    a.e(f"v_lshrrev_b32 {v(t0)}, 6, v0")
    a.e(f"v_lshlrev_b32 {v(vL16)}, 4, {v(vL)}")
    a.e(f"v_readfirstlane_b32 s{sWv}, {v(t0)}")
    a.e(f"s_and_b32 s{sT0}, s2, 7")
    a.e(f"s_lshr_b32 s{sT1}, s2, 3")
    a.e(f"s_lshr_b32 s{sPB}, s{sT0}, 1")
    a.e(f"s_lshl_b32 s{sPB}, s{sPB}, 3")
    a.e(f"s_and_b32 s{sNB}, s{sT1}, 7")
    a.e(f"s_add_u32 s{sPB}, s{sPB}, s{sNB}")
    a.e(f"s_and_b32 s{sNB}, s{sT0}, 1")
    a.e(f"s_lshl_b32 s{sNB}, s{sNB}, 2")
    a.e(f"s_lshr_b32 s{sT1}, s{sT1}, 3")
    a.e(f"s_add_u32 s{sNB}, s{sNB}, s{sT1}")
    a.e(f"s_lshr_b32 s{sT0}, s{sWv}, 1")
    a.e(f"s_and_b32 s{sT1}, s{sWv}, 1")
    a.e(f"s_lshl_b32 s{sO0}, s{sT0}, 21")
    a.e(f"s_lshl_b32 s{sT2}, s{sPB}, 16")
    a.e(f"s_add_u32 s{sO0}, s{sO0}, s{sT2}")
    a.e(f"s_lshl_b32 s{sT2}, s{sT1}, 14")
    a.e(f"s_add_u32 s{sO0}, s{sO0}, s{sT2}")
    a.e(f"s_add_u32 s{sO0}, s{sO0}, {WS_OF}")
    a.e(f"s_add_u32 s{sO1}, s{sO0}, 32768")
    a.e(f"s_lshl_b32 s{sW0}, s{sWv}, 18")
    a.e(f"s_lshl_b32 s{sT2}, s{sNB}, 11")
    a.e(f"s_add_u32 s{sW0}, s{sW0}, s{sT2}")
    a.e(f"s_add_u32 s{sW0}, s{sW0}, {WS_WF}")
    a.e("s_waitcnt lgkmcnt(0)")
    srd(a, sWS, P_WS, WS_SIZE)
    srd(a, sOUT, P_OUT, 2048*1024)
    def loads(k):
        b = BUF[k % NB]
        a.vm(f"buffer_load_dwordx4 {v(b,4)}, {v(vL16)}, s[{sWS}:{sWS+3}], s{sW0} offen", f"k{k}")
        a.vm(f"buffer_load_dwordx4 {v(b+4,4)}, {v(vL16)}, s[{sWS}:{sWS+3}], s{sW0} offen offset:1024", f"k{k}")
        o = (k & 3) * 1024
        a.vm(f"buffer_load_dwordx4 {v(b+8,4)}, {v(vL16)}, s[{sWS}:{sWS+3}], s{sO0} offen offset:{o}", f"k{k}")
        a.vm(f"buffer_load_dwordx4 {v(b+12,4)}, {v(vL16)}, s[{sWS}:{sWS+3}], s{sO1} offen offset:{o}", f"k{k}")
        a.e(f"s_add_u32 s{sW0}, s{sW0}, 16384")
        if (k & 3) == 3:
            a.e(f"s_add_u32 s{sO0}, s{sO0}, 4096")
            a.e(f"s_add_u32 s{sO1}, s{sO1}, 4096")
    for k in range(NB): loads(k)
    a.e(f"v_lshrrev_b32 {v(t0)}, 2, v0")
    a.e(f"v_lshlrev_b32 {v(t0)}, 2, {v(t0)}")
    a.e(f"s_lshl_b32 s{sT0}, s{sPB}, 8")
    a.e(f"s_add_u32 s{sT0}, s{sT0}, {WS_G}")
    a.vm(f"buffer_load_dword {v(vG)}, {v(t0)}, s[{sWS}:{sWS+3}], s{sT0} offen", "g")
    for k in range(16):
        b = BUF[k % NB]
        a.wait_vm(f"k{k}")
        for nt in range(2):
            for pt in range(2):
                D = ACC[nt][pt]
                Cc = "0" if k == 0 else v(D, 16)
                a.e(f"v_mfma_f32_32x32x16_bf16 {v(D,16)}, {v(b+4*nt,4)}, {v(b+8+4*pt,4)}, {Cc}")
        if k + NB < 16:
            loads(k + NB)
    a.e("s_nop 15")
    a.e(f"v_and_b32 {v(t0)}, 31, {v(vL)}")
    a.e(f"v_mul_u32_u24 {v(t0)}, {RS}, {v(t0)}")
    a.e(f"v_lshrrev_b32 {v(t1)}, 5, {v(vL)}")
    a.e(f"v_lshl_add_u32 {v(t0)}, {v(t1)}, 4, {v(t0)}")
    a.e(f"s_mul_i32 s{sT0}, s{sWv}, {64*RS}")
    a.e(f"v_add_u32 {v(t0)}, s{sT0}, {v(t0)}")
    for nt in range(2):
        for pt in range(2):
            for j in range(4):
                a.e(f"ds_write_b128 {v(t0)}, {v(ACC[nt][pt]+4*j,4)} offset:{pt*32*RS + nt*128 + j*32}")
    a.e("s_waitcnt lgkmcnt(0)")
    a.e("s_barrier")
    a.e(f"v_lshrrev_b32 {v(t0)}, 2, v0")
    a.e(f"v_mul_u32_u24 {v(t1)}, {RS}, {v(t0)}")
    a.e(f"v_and_b32 {v(t2)}, 3, v0")
    a.e(f"v_lshl_add_u32 {v(t1)}, {v(t2)}, 6, {v(t1)}")
    R = BUF[0]
    assert BUF[3] + 16 - BUF[0] == 64
    for w in range(4):
        for j in range(4):
            a.e(f"ds_read_b128 {v(R+16*w+4*j,4)}, {v(t1)} offset:{w*64*RS + j*16}")
    a.e(f"v_lshlrev_b32 {v(t0)}, 10, {v(t0)}")
    a.e(f"v_lshl_add_u32 {v(t0)}, {v(t2)}, 5, {v(t0)}")
    a.e(f"s_lshl_b32 s{sT0}, s{sPB}, 16")
    a.e(f"s_lshl_b32 s{sT1}, s{sNB}, 7")
    a.e(f"s_add_u32 s{sT0}, s{sT0}, s{sT1}")
    a.e("s_waitcnt vmcnt(0)")
    a.e(f"v_sub_f32 {v(vG+1)}, 1.0, {v(vG)}")
    a.e("s_waitcnt lgkmcnt(8)")
    for i in range(16):
        a.e(f"v_add_f32 {v(R+i)}, {v(R+i)}, {v(R+16+i)}")
    for i in range(16):
        a.e(f"v_mul_f32 {v(R+i)}, {v(R+i)}, {v(vG)}")
    a.e("s_waitcnt lgkmcnt(0)")
    for i in range(16):
        a.e(f"v_add_f32 {v(R+32+i)}, {v(R+32+i)}, {v(R+48+i)}")
    for i in range(16):
        a.e(f"v_fmac_f32 {v(R+i)}, {v(R+32+i)}, {v(vG+1)}")
    for i in range(8):
        a.e(f"v_cvt_pk_bf16_f32 {v(R+16+i)}, {v(R+2*i)}, {v(R+2*i+1)}")
    a.e(f"buffer_store_dwordx4 {v(R+16,4)}, {v(t0)}, s[{sOUT}:{sOUT+3}], s{sT0} offen")
    a.e(f"buffer_store_dwordx4 {v(R+20,4)}, {v(t0)}, s[{sOUT}:{sOUT+3}], s{sT0} offen offset:16")
    a.label(f"{name}_end")
    a.e("s_endpgm")
    return a.text(), a.vmax
```

```python
import sys
from dsl import *
from gen_k1 import gen_k1, K1_LDS
from gen_k2 import gen_k2, K2_LDS
from gen_k3 import gen_k3, K3_LDS
NAME = "gated_mix__sliding_local_dilated__grouped_kv_mqa__prompt"
def build():
    head = open(f"cdna_kernels/{NAME}.s.ref").read().splitlines()
    hdr = [l for l in head if l.startswith(";") and "@launch" not in l and "Override launch" not in l and "grid=ceil" not in l]
    out = "\n".join(hdr) + "\n"
    ks = [("proj_kernel", gen_k1, 256, K1_LDS), ("attn_kernel", gen_k2, 512, K2_LDS), ("oproj_kernel", gen_k3, 256, K3_LDS)]
    for n, g, blk, lds in ks:
        out += f"; @launch kernel={n} grid=(256,1,1) block=({blk},1,1) lds={lds}\n"
    out += '.amdgcn_target "amdgcn-amd-amdhsa--gfx950"\n'
    descs = ""
    for n, g, blk, lds in ks:
        body, nv = g(n)
        out += kernel_header(n) + body
        descs += kernel_desc(n, nv)
        print(n, "vgprs", nv, "lines", len(body.splitlines()), file=sys.stderr)
    out += descs
    return out
if __name__ == "__main__":
    if "--stamps" in sys.argv:
        Asm.STAMPS = True; sys.argv.remove("--stamps")
    dst = sys.argv[1] if len(sys.argv) > 1 else f"cdna_kernels/{NAME}.s"
    open(dst, "w").write(build())
```

```python
class Asm:
    def __init__(self):
        self.lines = []
        self.lds_q = []
        self.vm_q = []
        self.nv = 0
        self.vmax = 0
    def e(self, s):
        self.lines.append("    " + s)
    def c(self, s):
        self.lines.append("    ; " + s)
    def label(self, s):
        self.lines.append(s + ":")
    def raw(self, s):
        self.lines.append(s)
    def valloc(self, n, align=1):
        if n >= 2 and align < 2: align = 2
        self.nv = (self.nv + align - 1) // align * align
        r = self.nv
        self.nv += n
        self.vmax = max(self.vmax, self.nv)
        return r
    def lds(self, s, tag=None):
        self.e(s); self.lds_q.append(tag)
    def vm(self, s, tag=None):
        self.e(s); self.vm_q.append(tag)
    def _need(self, q, tags):
        idx = -1
        for i, t in enumerate(q):
            if t in tags: idx = i
        return idx
    def wait_lds(self, *tags):
        idx = self._need(self.lds_q, tags)
        if idx < 0: return
        n = len(self.lds_q) - 1 - idx
        self.e(f"s_waitcnt lgkmcnt({min(n,15)})")
        self.lds_q = self.lds_q[idx+1:] if n <= 15 else self.lds_q[-15:]
    def wait_vm(self, *tags):
        idx = self._need(self.vm_q, tags)
        if idx < 0: return
        n = len(self.vm_q) - 1 - idx
        self.e(f"s_waitcnt vmcnt({min(n,63)})")
        self.vm_q = self.vm_q[idx+1:] if n <= 63 else self.vm_q[-63:]
    def wait_lds_all(self):
        self.e("s_waitcnt lgkmcnt(0)"); self.lds_q = []
    def wait_vm_all(self):
        self.e("s_waitcnt vmcnt(0)"); self.vm_q = []
    STAMPS = False
    def stamp(self, real=False):
        if not Asm.STAMPS: return
        n = getattr(self, "nst", 0)
        r = 78 + 2 * n
        assert r + 1 <= 101
        self.e(("s_memrealtime" if real else "s_memtime") + f" s[{r}:{r+1}]")
        self.e("s_waitcnt lgkmcnt(0)")
        self.lds_q = []
        self.nst = n + 1
    def dump_stamps(self, kidx, s_wave, s_ws, vt, vl, st):
        if not Asm.STAMPS: return
        self.e(f"v_mov_b32 v{vt}, 0")
        for i in range(self.nst):
            self.e(f"v_writelane_b32 v{vt}, s{78+2*i}, {i}")
        self.e(f"s_lshl_b32 s{st}, s2, 4")
        self.e(f"s_add_u32 s{st}, s{st}, s{s_wave}")
        self.e(f"s_lshl_b32 s{st}, s{st}, 6")
        self.e(f"s_add_u32 s{st}, s{st}, {0x900000 + kidx*256*16*64}")
        self.e(f"v_lshlrev_b32 v{vt+1}, 2, v{vl}")
        self.e(f"v_cmp_gt_u32 vcc, 16, v{vl}")
        self.e(f"s_mov_b64 exec, vcc")
        self.e(f"buffer_store_dword v{vt}, v{vt+1}, s[{s_ws}:{s_ws+3}], s{st} offen")
        self.e(f"s_mov_b64 exec, -1")
    def text(self):
        return "\n".join(self.lines) + "\n"

def v(r, n=1):
    return f"v{r}" if n == 1 else f"v[{r}:{r+n-1}]"
def s(r, n=1):
    return f"s{r}" if n == 1 else f"s[{r}:{r+n-1}]"

def kernel_header(name):
    return f""".text
.globl {name}
.p2align 8
.type {name},@function
{name}:
"""

def kernel_desc(name, nvgpr, nsgpr=102):
    nv = (nvgpr + 7) // 8 * 8
    return f""".section .rodata,"a"
.p2align 6
.amdhsa_kernel {name}
  .amdhsa_next_free_vgpr {nv}
  .amdhsa_next_free_sgpr {nsgpr}
  .amdhsa_accum_offset {nv}
  .amdhsa_group_segment_fixed_size 0
  .amdhsa_kernarg_size 96
  .amdhsa_user_sgpr_count 2
  .amdhsa_user_sgpr_kernarg_segment_ptr 1
  .amdhsa_system_sgpr_workgroup_id_x 1
.end_amdhsa_kernel
"""
```

```python
from dsl import *
import struct, math

WS_QF = 0x000000
WS_KV = 0x200000
WS_G  = 0x220000
WS_KN = 0x222000
WS_VN = 0x222200
WS_OF = 0x300000
WS_WF = 0x700000
WS_SIZE = 0xA00000
def f2u(x): return struct.unpack("<I", struct.pack("<f", x))[0]
C_SCALE = f2u(0.25 * math.log2(math.e))
NEG_BIG = f2u(-1e30)
LOG2E = f2u(math.log2(math.e))

P_X, P_WQKV, P_AWO, P_BX, P_WQ, P_WK, P_WV, P_BWO, P_GW, P_OUT, P_DBG, P_WS = [44 + 2*i for i in range(12)]

def load_kernargs(a):
    a.e("s_load_dwordx16 s[44:59], s[0:1], 0")
    a.e("s_load_dwordx8 s[60:67], s[0:1], 64")

def srd(a, r, p, size):
    a.e(f"s_mov_b32 s{r}, s{p}")
    a.e(f"s_mov_b32 s{r+1}, s{p+1}")
    a.e(f"s_mov_b32 s{r+2}, {size}")
    a.e(f"s_mov_b32 s{r+3}, 0x00020000")

def decode_wg(a, s_rb, s_hp, t0, t1):
    a.e(f"s_and_b32 s{t0}, s2, 7")
    a.e(f"s_lshr_b32 s{t1}, s2, 3")
    a.e(f"s_lshr_b32 s{s_rb}, s{t0}, 1")
    a.e(f"s_lshl_b32 s{s_rb}, s{s_rb}, 2")
    a.e(f"s_and_b32 s{s_hp}, s{t1}, 3")
    a.e(f"s_add_u32 s{s_rb}, s{s_rb}, s{s_hp}")
    a.e(f"s_and_b32 s{s_hp}, s{t0}, 1")
    a.e(f"s_lshl_b32 s{s_hp}, s{s_hp}, 3")
    a.e(f"s_lshr_b32 s{t1}, s{t1}, 2")
    a.e(f"s_add_u32 s{s_hp}, s{s_hp}, s{t1}")

XST = 20480
WB = 81920
WST = 16384
KWB = 147456
K1_LDS = 163840

def gen_k1(name):
    a = Asm()
    sX, sW, sKW, sGW, sWO, sWS = 8, 12, 16, 20, 24, 28
    sWv = 3
    sRB, sHP, sPG, sKIND = 32, 33, 34, 35
    sXh, sXm, sStr16, sWoff = 36, 37, 38, 39
    sT0, sT1, sT2, sT3 = 40, 41, 42, 43
    sM0X, sM0W = 68, 69
    sC = 70
    sFo = 71
    sRot = 76; sCC = 77
    a.valloc(1)
    vL = a.valloc(1); vH = a.valloc(1); vI = a.valloc(1)
    vL16 = a.valloc(1)
    t0 = a.valloc(1); t1 = a.valloc(1); t2 = a.valloc(1); t3 = a.valloc(1)
    Aq = a.valloc(16, 4); Ak = a.valloc(16, 4); Av = a.valloc(16, 4); AQ = a.valloc(16, 4)
    Hk = a.valloc(16, 4); Hv = a.valloc(16, 4)
    J = a.valloc(4, 4); Jg = a.valloc(4, 4)
    M = a.valloc(24, 4)
    WO = a.valloc(8, 4)
    free0 = a.nv
    XF = [a.valloc(4, 4), a.valloc(4, 4)]
    WF = [[a.valloc(4, 4) for _ in range(4)] for _ in range(2)]
    XH = a.valloc(4, 4); SX = a.valloc(2, 2); SW = a.valloc(2, 2)
    GW = a.valloc(16, 4)
    vWrd = [a.valloc(1) for _ in range(4)]
    vXrd = [a.valloc(1) for _ in range(4)]
    vXh = a.valloc(1); vXs = a.valloc(1); vKs = a.valloc(1); vXd = a.valloc(1); vWd = a.valloc(1)
    free1 = a.nv

    a.e("s_cmp_ge_u32 s2, 256")
    a.e(f"s_cbranch_scc1 {name}_end")
    a.stamp(True); a.stamp()
    load_kernargs(a)
    a.e(f"v_and_b32 {v(vL)}, 63, v0")
    a.e(f"v_lshrrev_b32 {v(t0)}, 6, v0")
    a.e(f"v_lshrrev_b32 {v(vH)}, 5, {v(vL)}")
    a.e(f"v_readfirstlane_b32 s{sWv}, {v(t0)}")
    a.e(f"v_and_b32 {v(vI)}, 31, {v(vL)}")
    a.e(f"v_lshlrev_b32 {v(vL16)}, 4, {v(vL)}")
    decode_wg(a, sRB, sHP, sT0, sT1)
    a.e(f"s_lshr_b32 s{sPG}, s{sHP}, 1")
    a.e(f"s_and_b32 s{sKIND}, s{sHP}, 1")
    a.e(f"s_mov_b32 s{sC}, {C_SCALE:#x}")
    a.e(f"s_lshl_b32 s{sXm}, s{sRB}, 17")
    a.e(f"s_sub_u32 s{sXm}, s{sXm}, 32768")
    a.e(f"s_cmp_eq_u32 s{sRB}, 0")
    a.e(f"s_cselect_b32 s{sXh}, 0, s{sXm}")
    a.e(f"s_cmp_lt_u32 s{sWv}, 3")
    a.e(f"s_mov_b32 s{sT0}, 3072")
    a.e(f"s_cselect_b32 s{sT2}, s{sT0}, 1024")
    a.e(f"s_lshl_b32 s{sStr16}, s{sT2}, 4")
    a.e(f"s_lshr_b32 s{sRot}, s2, 3")
    a.e(f"s_and_b32 s{sRot}, s{sRot}, 7")
    a.e(f"s_lshl_b32 s{sT0}, s{sWv}, 10")
    a.e(f"s_cmp_lt_u32 s{sWv}, 3")
    a.e(f"s_cselect_b32 s{sT0}, s{sT0}, 0")
    a.e(f"s_lshl_b32 s{sT1}, s{sHP}, 6")
    a.e(f"s_add_u32 s{sT3}, s{sT0}, s{sT1}")
    a.e(f"v_lshrrev_b32 {v(t0)}, 2, {v(vL)}")
    a.e(f"v_mul_lo_u32 {v(vWd)}, {v(t0)}, s{sT2}")
    a.e(f"v_and_b32 {v(t0)}, 3, {v(vL)}")
    a.e(f"v_lshlrev_b32 {v(t0)}, 4, {v(t0)}")
    a.e(f"v_add3_u32 {v(vWd)}, {v(vWd)}, {v(t0)}, s{sT3}")
    a.e(f"s_and_b32 s{sT0}, s{sWv}, 1")
    a.e(f"s_lshl_b32 s{sT0}, s{sT0}, 2")
    a.e(f"v_lshrrev_b32 {v(t0)}, 4, {v(vL)}")
    a.e(f"v_or_b32 {v(t0)}, s{sT0}, {v(t0)}")
    a.e(f"v_and_b32 {v(t1)}, 7, {v(vL)}")
    a.e(f"v_xor_b32 {v(t0)}, {v(t0)}, {v(t1)}")
    a.e(f"v_lshlrev_b32 {v(t0)}, 4, {v(t0)}")
    a.e(f"v_lshrrev_b32 {v(t1)}, 3, {v(vL)}")
    a.e(f"s_lshl_b32 s{sT0}, s{sWv}, 3")
    a.e(f"v_add_u32 {v(t1)}, s{sT0}, {v(t1)}")
    a.e(f"v_lshl_add_u32 {v(vXd)}, {v(t1)}, 10, {v(t0)}")
    a.e("s_waitcnt lgkmcnt(0)")
    srd(a, sX, P_X, 2048*1024)
    a.e(f"s_cmp_lt_u32 s{sWv}, 3")
    a.e(f"s_cselect_b32 s{sW}, s{P_WQKV}, s{P_WQ}")
    a.e(f"s_cselect_b32 s{sW+1}, s{P_WQKV+1}, s{P_WQ+1}")
    a.e(f"s_mov_b32 s{sT0}, {512*3072}")
    a.e(f"s_cselect_b32 s{sW+2}, s{sT0}, {512*1024}")
    a.e(f"s_mov_b32 s{sW+3}, 0x00020000")
    a.e(f"s_cmp_eq_u32 s{sKIND}, 0")
    a.e(f"s_cselect_b32 s{sKW}, s{P_WK}, s{P_WV}")
    a.e(f"s_cselect_b32 s{sKW+1}, s{P_WK+1}, s{P_WV+1}")
    a.e(f"s_mov_b32 s{sKW+2}, 16384")
    a.e(f"s_mov_b32 s{sKW+3}, 0x00020000")
    srd(a, sGW, P_GW, 1024)
    srd(a, sWS, P_WS, WS_SIZE)
    a.e(f"s_lshl_b32 s{sT0}, s{sWv}, 10")
    for n in range(4):
        a.e(f"s_lshl_b32 s{sT1}, s{sRot}, 11")
        a.e(f"s_add_u32 s{sT1}, s{sT1}, s{sT0}")
        a.e(f"s_add_u32 s{sT1}, s{sT1}, {n*4096}")
        a.e(f"s_add_u32 m0, s{sT0}, {KWB + n*4096}")
        a.e(f"s_and_b32 s{sT1}, s{sT1}, 16383")
        a.vm(f"buffer_load_dwordx4 {v(vL16)}, s[{sKW}:{sKW+3}], s{sT1} offen lds", "kw")
    a.e(f"s_lshl_b32 s{sM0X}, s{sWv}, 10")
    a.e(f"s_lshl_b32 s{sM0W}, s{sWv}, 12")
    def dma_ops(c):
        st = c & 3
        ops = []
        for n in range(5):
            def f(n=n):
                if n == 0:
                    a.e(f"s_add_u32 s{sCC}, s{sRot}, {c}")
                    a.e(f"s_and_b32 s{sCC}, s{sCC}, 7")
                    a.e(f"s_lshl_b32 s{sWoff}, s{sCC}, 2")
                    a.e(f"s_mul_i32 s{sWoff}, s{sWoff}, s{sStr16}")
                    a.e(f"s_lshl_b32 s{sCC}, s{sCC}, 7")
                a.e(f"s_add_u32 m0, s{sM0X}, {st*XST + n*4096}")
                if n == 0:
                    a.e(f"s_add_u32 s{sT1}, s{sXh}, s{sCC}")
                else:
                    a.e(f"s_add_u32 s{sT1}, s{sXm}, {n*32768}")
                    a.e(f"s_add_u32 s{sT1}, s{sT1}, s{sCC}")
                a.vm(f"buffer_load_dwordx4 {v(vXd)}, s[{sX}:{sX+3}], s{sT1} offen lds", f"ch{c}")
            ops.append(f)
        for n in range(4):
            def f(n=n):
                a.e(f"s_add_u32 m0, s{sM0W}, {WB + st*WST + n*1024}")
                a.e("s_nop 0")
                a.vm(f"buffer_load_dwordx4 {v(vWd)}, s[{sW}:{sW+3}], s{sWoff} offen lds", f"ch{c}")
                a.e(f"s_add_u32 s{sWoff}, s{sWoff}, s{sStr16}")
            ops.append(f)
        return ops
    for f in dma_ops(0): f()
    a.e(f"v_lshrrev_b32 {v(t0)}, 4, {v(vL)}")
    a.e(f"v_lshlrev_b32 {v(t0)}, 3, {v(t0)}")
    a.e(f"s_lshl_b32 s{sT0}, s{sWv}, 5")
    a.e(f"v_add_u32 {v(t0)}, s{sT0}, {v(t0)}")
    a.e(f"v_and_b32 {v(t1)}, 15, {v(vL)}")
    a.e(f"v_lshlrev_b32 {v(t1)}, 16, {v(t1)}")
    a.e(f"v_add_u32 {v(t0)}, {v(t0)}, {v(t1)}")
    for c in range(8):
        a.e(f"s_add_u32 s{sT1}, s{sRot}, {c}")
        a.e(f"s_and_b32 s{sT1}, s{sT1}, 7")
        a.e(f"s_lshl_b32 s{sT1}, s{sT1}, 7")
        a.vm(f"buffer_load_dwordx2 {v(GW+2*c,2)}, {v(t0)}, s[{sGW}:{sGW+3}], s{sT1} offen", "gw")
    for c in (1, 2, 3):
        for f in dma_ops(c): f()
    a.e(f"s_lshl_b32 s{sT0}, s2, 2")
    a.e(f"s_add_u32 s{sT0}, s{sT0}, s{sWv}")
    a.e(f"s_lshl_b32 s{sFo}, s{sT0}, 10")
    a.e(f"s_cmp_lt_u32 s{sT0}, 512")
    a.e(f"s_cselect_b32 s{sWO}, s{P_AWO}, s{P_BWO}")
    a.e(f"s_cselect_b32 s{sWO+1}, s{P_AWO+1}, s{P_BWO+1}")
    a.e(f"s_mov_b32 s{sWO+2}, {512*1024}")
    a.e(f"s_mov_b32 s{sWO+3}, 0x00020000")
    a.e(f"s_lshr_b32 s{sT1}, s{sT0}, 4")
    a.e(f"s_and_b32 s{sT1}, s{sT1}, 31")
    a.e(f"s_lshl_b32 s{sT1}, s{sT1}, 14")
    a.e(f"s_and_b32 s{sT0}, s{sT0}, 15")
    a.e(f"s_lshl_b32 s{sT0}, s{sT0}, 6")
    a.e(f"s_add_u32 s{sT0}, s{sT0}, s{sT1}")
    a.e(f"s_add_u32 s{sT1}, s{sT0}, 8192")
    a.e(f"v_lshlrev_b32 {v(t0)}, 12, {v(vH)}")
    a.e(f"v_lshl_add_u32 {v(t0)}, {v(vI)}, 1, {v(t0)}")
    for i in range(8):
        so = sT0 if i < 4 else sT1
        op = "buffer_load_short_d16" if i % 2 == 0 else "buffer_load_short_d16_hi"
        a.vm(f"{op} {v(WO+i)}, {v(t0)}, s[{sWO}:{sWO+3}], s{so} offen offset:{(i&3)*1024}", "wo")
    a.e(f"v_lshlrev_b32 {v(t0)}, 9, {v(vH)}")
    a.e(f"v_bfe_u32 {v(t1)}, {v(vL)}, 2, 2")
    a.e(f"v_lshl_add_u32 {v(t0)}, {v(t1)}, 6, {v(t0)}")
    a.e(f"v_bfe_u32 {v(t1)}, {v(vL)}, 4, 1")
    a.e(f"v_lshl_add_u32 {v(t0)}, {v(t1)}, 5, {v(t0)}")
    a.e(f"v_and_b32 {v(t1)}, 3, {v(vL)}")
    a.e(f"v_lshl_add_u32 {v(t0)}, {v(t1)}, 3, {v(t0)}")
    for p in range(4):
        a.e(f"s_add_u32 s{sT0}, s{sWv}, {p}")
        a.e(f"s_and_b32 s{sT0}, s{sT0}, 3")
        a.e(f"s_lshl_b32 s{sT1}, s{sT0}, 10")
        a.e(f"s_add_u32 s{sT1}, s{sT1}, {WB}")
        a.e(f"v_add_u32 {v(vWrd[p])}, s{sT1}, {v(t0)}")
        a.e(f"s_lshl_b32 s{sT0}, s{sT0}, 1")
        a.e(f"v_add_u32 {v(t1)}, s{sT0}, {v(vH)}")
        a.e(f"v_bfe_u32 {v(t2)}, {v(vI)}, 1, 3")
        a.e(f"v_xor_b32 {v(t1)}, {v(t1)}, {v(t2)}")
        a.e(f"v_lshlrev_b32 {v(t1)}, 4, {v(t1)}")
        a.e(f"v_lshl_add_u32 {v(t1)}, {v(vI)}, 7, {v(t1)}")
        if p == 0:
            a.e(f"v_mov_b32 {v(vXh)}, {v(t1)}")
        a.e(f"s_lshl_b32 s{sT1}, s{sWv}, 12")
        a.e(f"s_add_u32 s{sT1}, s{sT1}, 4096")
        a.e(f"v_add_u32 {v(vXrd[p])}, s{sT1}, {v(t1)}")
    a.e(f"v_and_b32 {v(t0)}, 15, {v(vL)}")
    a.e(f"v_lshrrev_b32 {v(t1)}, 1, {v(t0)}")
    a.e(f"s_lshl_b32 s{sT0}, s{sWv}, 1")
    a.e(f"v_add_u32 {v(t2)}, s{sT0}, {v(vH)}")
    a.e(f"v_xor_b32 {v(t1)}, {v(t1)}, {v(t2)}")
    a.e(f"v_lshlrev_b32 {v(t1)}, 4, {v(t1)}")
    a.e(f"v_lshl_add_u32 {v(t1)}, {v(t0)}, 7, {v(t1)}")
    a.e(f"v_bfe_u32 {v(t2)}, {v(vL)}, 4, 1")
    a.e(f"v_lshl_add_u32 {v(t1)}, {v(t2)}, 3, {v(t1)}")
    a.e(f"s_lshl_b32 s{sT0}, s{sPG}, 11")
    a.e(f"s_add_u32 s{sT0}, s{sT0}, 4096")
    a.e(f"v_add_u32 {v(vXs)}, s{sT0}, {v(t1)}")
    a.e(f"s_lshl_b32 s{sT0}, s{sWv}, 9")
    a.e(f"s_add_u32 s{sT0}, s{sT0}, {KWB}")
    a.e(f"v_lshlrev_b32 {v(t0)}, 3, {v(vL)}")
    a.e(f"v_add_u32 {v(vKs)}, s{sT0}, {v(t0)}")
    a.e(f"v_lshlrev_b32 {v(t0)}, 2, {v(vH)}")
    a.e(f"v_sub_u32 {v(t0)}, {v(vI)}, {v(t0)}")
    a.e(f"s_or_b32 s{sT0}, s{sRB}, s{sWv}")
    a.e(f"s_cmp_eq_u32 s{sT0}, 0")
    a.e(f"s_cselect_b32 s{sT0}, 0x1020, 32")
    a.e(f"v_add_u32 {v(t1)}, s{sT0}, {v(t0)}")
    vNeg = J; vZero = J + 1; tt = Jg
    a.e(f"v_mov_b32 {v(vNeg)}, {NEG_BIG:#x}")
    a.e(f"v_mov_b32 {v(vZero)}, 0")
    MS = [4, 6, 72, 74]
    regs = [(r, t0, M + r) for r in range(16)] + [(r, t1, M + 16 + (r - 8)) for r in range(8, 16)]
    for g0 in range(0, 24, 4):
        grp = regs[g0:g0+4]
        for k, (r, base, dst) in enumerate(grp):
            rc = (r & 3) + 8 * (r >> 2)
            a.e(f"v_subrev_u32 {v(tt+k)}, {rc}, {v(base)}")
            a.e(f"v_and_b32 {v(tt+k)}, 0xfffffff1, {v(tt+k)}")
            a.e(f"v_cmp_eq_u32 s[{MS[k]}:{MS[k]+1}], 0, {v(tt+k)}")
        a.e("s_nop 1")
        for k, (r, base, dst) in enumerate(grp):
            a.e(f"v_cndmask_b32 {v(dst)}, {v(vNeg)}, {v(vZero)}, s[{MS[k]}:{MS[k]+1}]")

    def reads(sn):
        c = sn >> 2; p = sn & 3; st = c & 3; se = sn & 1
        r = []
        r.append(lambda: a.lds(f"ds_read_b128 {v(XF[se],4)}, {v(vXrd[p])} offset:{st*XST}", f"X{sn}"))
        def wrd(t):
            r.append(lambda: a.lds(f"ds_read_b64_tr_b16 {v(WF[se][t],2)}, {v(vWrd[p])} offset:{st*WST + t*4096}", f"W{t}_{sn}"))
            r.append(lambda: a.lds(f"ds_read_b64_tr_b16 {v(WF[se][t]+2,2)}, {v(vWrd[p])} offset:{st*WST + t*4096 + 256}", f"W{t}_{sn}"))
        wrd(0); wrd(1)
        if p == 0:
            r.append(lambda: a.lds(f"ds_read_b128 {v(XH,4)}, {v(vXh)} offset:{st*XST}", f"XH{sn}"))
        wrd(2); wrd(3)
        if p == 0:
            r.append(lambda: a.lds(f"ds_read_b64 {v(SX,2)}, {v(vXs)} offset:{st*XST}", f"SX{sn}"))
            r.append(lambda: a.lds(f"ds_read_b64_tr_b16 {v(SW,2)}, {v(vKs)} offset:{c*2048}", f"SW{sn}"))
        return r
    def mfmas(sn):
        c = sn >> 2; p = sn & 3; se = sn & 1
        first = sn == 0
        def big(D, A, B, tags):
            def f():
                a.wait_lds(*tags)
                Cc = "0" if first else v(D, 16)
                a.e(f"v_mfma_f32_32x32x16_bf16 {v(D,16)}, {v(A,4)}, {v(B,4)}, {Cc}")
            return f
        def small(D, A, B, tags):
            def f():
                a.wait_lds(*tags)
                Cc = "0" if first else v(D, 4)
                a.e(f"v_mfma_f32_16x16x16_bf16 {v(D,4)}, {v(A,2)}, {v(B,2)}, {Cc}")
            return f
        X = XF[se]; W = WF[se]
        m = [big(Aq, W[0], X, (f"X{sn}", f"W0_{sn}")), big(Ak, W[1], X, (f"W1_{sn}",))]
        if p == 0: m.append(big(Hk, W[1], XH, (f"XH{sn}",)))
        m.append(big(Av, X, W[2], (f"W2_{sn}",)))
        if p == 0: m.append(big(Hv, XH, W[2], ()))
        m.append(big(AQ, W[3], X, (f"W3_{sn}",)))
        if p == 0:
            m.append(small(J, SW, SX, (f"SX{sn}", f"SW{sn}")))
            m.append(small(Jg, GW + 2*c, SX, ()))
        return m
    a.stamp()
    a.wait_vm("ch0", "gw")
    a.e("s_barrier")
    a.stamp()
    for f in reads(0): f()
    pending_dma = []
    for sn in range(32):
        c = sn >> 2; p = sn & 3
        ms = mfmas(sn)
        rd = reads(sn + 1) if sn < 31 else []
        nslots = len(ms)
        for k, mf in enumerate(ms):
            mf()
            if k == 0 and p == 3 and c < 7:
                a.wait_vm(f"ch{c+1}")
                a.e("s_barrier")
                if c >= 1 and c + 3 <= 7:
                    pending_dma = dma_ops(c + 3)
            n = (len(rd) + (nslots - k) - 1) // (nslots - k)
            for _ in range(n):
                rd.pop(0)()
            for _ in range(2):
                if pending_dma: pending_dma.pop(0)()
        assert not rd
    assert not pending_dma

    a.nv = free0
    Kf = a.valloc(8, 4); Vf = a.valloc(8, 4); Qf = a.valloc(8, 4); QB = a.valloc(8, 4); Vp = a.valloc(4, 4)
    P = a.valloc(24, 4); ONES = a.valloc(4, 4)
    vA = a.valloc(1); vB = a.valloc(1); mx = [a.valloc(1), a.valloc(1)]; mt = [a.valloc(1), a.valloc(1)]
    assert a.nv <= free1 + 8, (a.nv, free1)
    Kp = QB
    a.e("s_nop 15")
    a.stamp()
    for i in range(8):
        a.e(f"v_cvt_pk_bf16_f32 {v(Kf+i)}, {v(Ak+2*i)}, {v(Ak+2*i+1)}")
    for i in range(8):
        a.e(f"v_cvt_pk_bf16_f32 {v(Vf+i)}, {v(Av+2*i)}, {v(Av+2*i+1)}")
    a.e(f"s_mul_i32 s{sT0}, s{sWv}, 3072")
    a.e(f"v_add_u32 {v(vA)}, s{sT0}, {v(vL16)}")
    a.lds(f"ds_write_b128 {v(vA)}, {v(Kf,4)}")
    a.lds(f"ds_write_b128 {v(vA)}, {v(Kf+4,4)} offset:1024")
    a.lds(f"ds_write_b128 {v(vA)}, {v(Vf+4,4)} offset:2048")
    a.e(f"s_mul_i32 s{sT0}, s{sWv}, 6144")
    a.e(f"s_add_u32 s{sT0}, s{sT0}, {WB}")
    a.e(f"v_add_u32 {v(vB)}, s{sT0}, {v(vL16)}")
    for i in range(4):
        a.lds(f"ds_write_b128 {v(vB)}, {v(Hk+4*i,4)} offset:{i*1024}")
    for i in range(2):
        a.lds(f"ds_write_b128 {v(vB)}, {v(Hv+8+4*i,4)} offset:{4096+i*1024}")
    a.e(f"s_lshl_b32 s{sT0}, s{sWv}, 11")
    a.e(f"v_add_u32 {v(vB)}, s{sT0}, {v(vL16)}")
    a.lds(f"ds_write_b128 {v(vB)}, {v(J,4)} offset:12288")
    a.lds(f"ds_write_b128 {v(vB)}, {v(Jg,4)} offset:{12288+1024}")
    for i in range(16):
        a.e(f"v_mul_f32 {v(AQ+i)}, s{sC}, {v(AQ+i)}")
    for i in range(8):
        a.e(f"v_cvt_pk_bf16_f32 {v(QB+i)}, {v(AQ+2*i)}, {v(AQ+2*i+1)}")
    a.e(f"s_lshl_b32 s{sT0}, s{sRB}, 2")
    a.e(f"s_add_u32 s{sT0}, s{sT0}, s{sWv}")
    a.e(f"s_lshl_b32 s{sT0}, s{sT0}, 5")
    a.e(f"s_lshl_b32 s{sT1}, s{sHP}, 1")
    a.e(f"s_add_u32 s{sT0}, s{sT0}, s{sT1}")
    a.e(f"s_lshl_b32 s{sT2}, s{sT0}, 10")
    if WS_QF: a.e(f"s_add_u32 s{sT2}, s{sT2}, {WS_QF}")
    a.vm(f"buffer_store_dwordx4 {v(QB,4)}, {v(vL16)}, s[{sWS}:{sWS+3}], s{sT2} offen")
    a.vm(f"buffer_store_dwordx4 {v(QB+4,4)}, {v(vL16)}, s[{sWS}:{sWS+3}], s{sT2} offen offset:1024")
    a.e(f"s_add_u32 s{sT2}, s{sT2}, {WS_OF - WS_QF}")
    for i in range(16):
        a.e(f"v_mul_f32 {v(Aq+i)}, s{sC}, {v(Aq+i)}")
    for i in range(8):
        a.e(f"v_cvt_pk_bf16_f32 {v(Qf+i)}, {v(Aq+2*i)}, {v(Aq+2*i+1)}")
    for i in range(4):
        a.e(f"v_or_b32 {v(WO+i)}, {v(WO+2*i)}, {v(WO+2*i+1)}") if i else a.e(f"v_or_b32 {v(WO)}, {v(WO)}, {v(WO+1)}")
    a.e(f"s_add_u32 s{sFo}, s{sFo}, {WS_WF}")
    a.vm(f"buffer_store_dwordx4 {v(WO,4)}, {v(vL16)}, s[{sWS}:{sWS+3}], s{sFo} offen")
    for i in range(4):
        a.e(f"v_mov_b32 {v(ONES+i)}, 0x3f803f80")
    a.wait_lds_all()
    a.e("s_barrier")
    a.e(f"s_cmp_eq_u32 s{sWv}, 0")
    a.e(f"s_cbranch_scc1 {name}_halo")
    a.e(f"v_subrev_u32 {v(vA)}, 3072, {v(vA)}")
    a.e(f"ds_read_b128 {v(Kp,4)}, {v(vA)}")
    a.e(f"ds_read_b128 {v(Kp+4,4)}, {v(vA)} offset:1024")
    a.e(f"ds_read_b128 {v(Vp,4)}, {v(vA)} offset:2048")
    a.e("s_waitcnt lgkmcnt(0)")
    a.e(f"s_branch {name}_attn")
    a.label(f"{name}_halo")
    a.e(f"v_add_u32 {v(vB)}, {WB}, {v(vL16)}")
    for w in (1, 2, 3):
        for i in range(6):
            a.e(f"ds_read_b128 {v(P+4*i,4)}, {v(vB)} offset:{w*6144 + i*1024}")
        for i in range(6):
            a.e(f"s_waitcnt lgkmcnt({5-i})")
            dst = Hk + 4*i if i < 4 else Hv + 8 + 4*(i-4)
            for k in range(4):
                a.e(f"v_add_f32 {v(dst+k)}, {v(dst+k)}, {v(P+4*i+k)}")
    for i in range(8):
        a.e(f"v_cvt_pk_bf16_f32 {v(Kp+i)}, {v(Hk+2*i)}, {v(Hk+2*i+1)}")
    for i in range(4):
        a.e(f"v_cvt_pk_bf16_f32 {v(Vp+i)}, {v(Hv+8+2*i)}, {v(Hv+8+2*i+1)}")
    a.e("s_nop 1")
    a.label(f"{name}_attn")
    a.stamp()
    Sc = [Aq, Av]; Sp = [Ak, AQ]
    for hd in range(2):
        a.e(f"v_mfma_f32_32x32x16_bf16 {v(Sc[hd],16)}, {v(Kf+4*hd,4)}, {v(Qf+4*hd,4)}, {v(M,16)}")
        a.e(f"v_mfma_f32_32x32x16_bf16 {v(Sp[hd],16)}, {v(Kp+4*hd,4)}, {v(Qf+4*hd,4)}, {v(M+8,16)}")
    a.e("s_nop 9")
    for hd in range(2):
        vals = [Sc[hd] + r for r in range(16)] + [Sp[hd] + r for r in range(8, 16)]
        if hd == 1: a.e("s_nop 3")
        a.e(f"v_max3_f32 {v(mx[hd])}, {v(vals[0])}, {v(vals[1])}, {v(vals[2])}")
        k = 3
        while k < 24:
            if k + 1 < 24:
                a.e(f"v_max3_f32 {v(mx[hd])}, {v(mx[hd])}, {v(vals[k])}, {v(vals[k+1])}"); k += 2
            else:
                a.e(f"v_max_f32 {v(mx[hd])}, {v(mx[hd])}, {v(vals[k])}"); k += 1
        a.e(f"v_mov_b32 {v(mt[hd])}, {v(mx[hd])}")
        a.e("s_nop 1")
        a.e(f"v_permlane32_swap_b32 {v(mx[hd])}, {v(mt[hd])}")
        a.e("s_nop 1")
        a.e(f"v_max_f32 {v(mx[hd])}, {v(mx[hd])}, {v(mt[hd])}")
        for r in vals:
            a.e(f"v_sub_f32 {v(r)}, {v(r)}, {v(mx[hd])}")
        for r in vals:
            a.e(f"v_exp_f32 {v(r)}, {v(r)}")
        a.e("s_nop 0")
        Ph = P + 12*hd
        for i in range(12):
            a.e(f"v_cvt_pk_bf16_f32 {v(Ph+i)}, {v(vals[2*i])}, {v(vals[2*i+1])}")
        a.e("s_nop 1")
        O = Sc[hd]; Lr = Sp[hd]
        a.e(f"v_mfma_f32_32x32x16_bf16 {v(O,16)}, {v(Vf,4)}, {v(Ph,4)}, 0")
        a.e(f"v_mfma_f32_32x32x16_bf16 {v(Lr,16)}, {v(ONES,4)}, {v(Ph,4)}, 0")
        a.e(f"v_mfma_f32_32x32x16_bf16 {v(O,16)}, {v(Vf+4,4)}, {v(Ph+4,4)}, {v(O,16)}")
        a.e(f"v_mfma_f32_32x32x16_bf16 {v(Lr,16)}, {v(ONES,4)}, {v(Ph+4,4)}, {v(Lr,16)}")
        a.e(f"v_mfma_f32_32x32x16_bf16 {v(O,16)}, {v(Vp,4)}, {v(Ph+8,4)}, {v(O,16)}")
        a.e(f"v_mfma_f32_32x32x16_bf16 {v(Lr,16)}, {v(ONES,4)}, {v(Ph+8,4)}, {v(Lr,16)}")
    for hd in range(2):
        O = Sc[hd]; Lr = Sp[hd]
        if hd == 1: a.e("s_nop 15")
        a.e(f"v_rcp_f32 {v(mx[hd])}, {v(Lr)}")
        a.e("s_nop 0")
        for j in range(8):
            a.e(f"v_mul_f32 {v(O+8*hd+j)}, {v(O+8*hd+j)}, {v(mx[hd])}")
        for i in range(4):
            a.e(f"v_cvt_pk_bf16_f32 {v(Kf+4*hd+i)}, {v(O+8*hd+2*i)}, {v(O+8*hd+2*i+1)}")
        a.e(f"buffer_store_dwordx4 {v(Kf+4*hd,4)}, {v(vL16)}, s[{sWS}:{sWS+3}], s{sT2} offen offset:{hd*1024}")
    a.stamp(); a.stamp(True)
    a.dump_stamps(0, sWv, sWS, P, vL, sT0)
    a.e(f"s_cmp_lg_u32 s{sWv}, 3")
    a.e(f"s_cbranch_scc1 {name}_end")
    for w in range(3):
        a.e(f"ds_read_b128 {v(P+8*w,4)}, {v(vL16)} offset:{12288 + w*2048}")
        a.e(f"ds_read_b128 {v(P+8*w+4,4)}, {v(vL16)} offset:{12288 + w*2048 + 1024}")
    a.e("s_waitcnt lgkmcnt(0)")
    for w in range(3):
        for k in range(4):
            a.e(f"v_add_f32 {v(J+k)}, {v(J+k)}, {v(P+8*w+k)}")
        a.e(f"v_add_f32 {v(Jg)}, {v(Jg)}, {v(P+8*w+4)}")
    a.e(f"v_cvt_pk_bf16_f32 {v(Vf)}, {v(J)}, {v(J+1)}")
    a.e(f"v_cvt_pk_bf16_f32 {v(Vf+1)}, {v(J+2)}, {v(J+3)}")
    a.e(f"s_lshl_b32 s{sT0}, s{sRB}, 2")
    a.e(f"s_lshr_b32 s{sT1}, s{sPG}, 1")
    a.e(f"s_add_u32 s{sT0}, s{sT0}, s{sT1}")
    a.e(f"s_lshl_b32 s{sT0}, s{sT0}, 11")
    a.e(f"s_add_u32 s{sT0}, s{sT0}, {WS_KV}")
    a.e(f"s_and_b32 s{sT1}, s{sPG}, 1")
    a.e(f"s_lshl_b32 s{sT3}, s{sRB}, 3")
    a.e(f"s_add_u32 s{sT3}, s{sT3}, s{sPG}")
    a.e(f"v_and_b32 {v(t0)}, 15, {v(vL)}")
    a.e(f"v_bfe_u32 {v(t1)}, {v(vL)}, 4, 1")
    a.e(f"s_cmp_eq_u32 s{sKIND}, 0")
    a.e(f"s_cbranch_scc0 {name}_vkind")
    a.e(f"s_lshl_b32 s{sT1}, s{sT1}, 8")
    a.e(f"s_add_u32 s{sT0}, s{sT0}, s{sT1}")
    a.e(f"v_lshlrev_b32 {v(t2)}, 4, {v(t0)}")
    a.e(f"v_lshl_add_u32 {v(t2)}, {v(t1)}, 9, {v(t2)}")
    a.e(f"v_lshl_add_u32 {v(t2)}, {v(vH)}, 3, {v(t2)}")
    a.e(f"buffer_store_dwordx2 {v(Vf,2)}, {v(t2)}, s[{sWS}:{sWS+3}], s{sT0} offen")
    a.e(f"v_mul_f32 {v(t2)}, {v(J)}, {v(J)}")
    for k in range(1, 4):
        a.e(f"v_fmac_f32 {v(t2)}, {v(J+k)}, {v(J+k)}")
    a.e(f"v_mov_b32 {v(t3)}, {v(t2)}")
    a.e("s_nop 1")
    a.e(f"v_permlane16_swap_b32 {v(t2)}, {v(t3)}")
    a.e("s_nop 1")
    a.e(f"v_add_f32 {v(t2)}, {v(t2)}, {v(t3)}")
    a.e(f"v_mov_b32 {v(t3)}, {v(t2)}")
    a.e("s_nop 1")
    a.e(f"v_permlane32_swap_b32 {v(t2)}, {v(t3)}")
    a.e("s_nop 1")
    a.e(f"v_add_f32 {v(t2)}, {v(t2)}, {v(t3)}")
    def rowmax(r):
        for sh in (8, 4, 2, 1):
            a.e("s_nop 1")
            a.e(f"v_max_f32_dpp {v(r)}, {v(r)}, {v(r)} row_ror:{sh} row_mask:0xf bank_mask:0xf")
    rowmax(t2)
    a.e(f"v_mul_f32 {v(Jg)}, {(LOG2E ^ 0x80000000):#x}, {v(Jg)}")
    a.e(f"v_exp_f32 {v(Jg)}, {v(Jg)}")
    a.e("s_nop 0")
    a.e(f"v_add_f32 {v(Jg)}, 1.0, {v(Jg)}")
    a.e(f"v_rcp_f32 {v(Jg)}, {v(Jg)}")
    a.e(f"v_lshrrev_b32 {v(t3)}, 4, {v(vL)}")
    a.e(f"v_lshlrev_b32 {v(t3)}, 24, {v(t3)}")
    a.e(f"v_lshl_add_u32 {v(t3)}, {v(t0)}, 2, {v(t3)}")
    a.e(f"s_lshl_b32 s{sT1}, s{sT3}, 6")
    a.e(f"s_add_u32 s{sT1}, s{sT1}, {WS_G}")
    a.e(f"buffer_store_dword {v(Jg)}, {v(t3)}, s[{sWS}:{sWS+3}], s{sT1} offen")
    a.e(f"s_lshl_b32 s{sT1}, s{sT3}, 2")
    a.e(f"s_add_u32 s{sT1}, s{sT1}, {WS_KN}")
    a.e(f"s_branch {name}_nstore")
    a.label(f"{name}_vkind")
    a.e(f"s_lshl_b32 s{sT1}, s{sT1}, 9")
    a.e(f"s_add_u32 s{sT0}, s{sT0}, s{sT1}")
    a.e(f"s_add_u32 s{sT0}, s{sT0}, 1024")
    a.e(f"v_bfe_u32 {v(t2)}, {v(t0)}, 2, 1")
    a.e(f"v_lshlrev_b32 {v(t2)}, 8, {v(t2)}")
    a.e(f"v_lshrrev_b32 {v(t3)}, 4, {v(vL)}")
    a.e(f"v_lshl_add_u32 {v(t2)}, {v(t3)}, 6, {v(t2)}")
    a.e(f"v_and_b32 {v(t3)}, 3, {v(t0)}")
    a.e(f"v_lshl_add_u32 {v(t2)}, {v(t3)}, 1, {v(t2)}")
    a.e(f"v_lshrrev_b32 {v(t3)}, 3, {v(t0)}")
    a.e(f"v_lshl_add_u32 {v(t2)}, {v(t3)}, 3, {v(t2)}")
    a.e(f"buffer_store_short {v(Vf)}, {v(t2)}, s[{sWS}:{sWS+3}], s{sT0} offen")
    a.e(f"buffer_store_short_d16_hi {v(Vf)}, {v(t2)}, s[{sWS}:{sWS+3}], s{sT0} offen offset:16")
    a.e(f"buffer_store_short {v(Vf+1)}, {v(t2)}, s[{sWS}:{sWS+3}], s{sT0} offen offset:32")
    a.e(f"buffer_store_short_d16_hi {v(Vf+1)}, {v(t2)}, s[{sWS}:{sWS+3}], s{sT0} offen offset:48")
    a.e(f"v_max_f32 {v(t2)}, abs({v(J)}), abs({v(J+1)})")
    a.e(f"v_max3_f32 {v(t2)}, {v(t2)}, abs({v(J+2)}), abs({v(J+3)})")
    a.e(f"v_mov_b32 {v(t3)}, {v(t2)}")
    a.e("s_nop 1")
    a.e(f"v_permlane16_swap_b32 {v(t2)}, {v(t3)}")
    a.e("s_nop 1")
    a.e(f"v_max_f32 {v(t2)}, {v(t2)}, {v(t3)}")
    a.e(f"v_mov_b32 {v(t3)}, {v(t2)}")
    a.e("s_nop 1")
    a.e(f"v_permlane32_swap_b32 {v(t2)}, {v(t3)}")
    a.e("s_nop 1")
    a.e(f"v_max_f32 {v(t2)}, {v(t2)}, {v(t3)}")
    rowmax(t2)
    a.e(f"s_lshl_b32 s{sT1}, s{sT3}, 2")
    a.e(f"s_add_u32 s{sT1}, s{sT1}, {WS_VN}")
    a.label(f"{name}_nstore")
    a.e(f"v_lshlrev_b32 {v(t3)}, 24, {v(vL)}")
    a.e(f"buffer_store_dword {v(t2)}, {v(t3)}, s[{sWS}:{sWS+3}], s{sT1} offen")
    a.label(f"{name}_end")
    a.e("s_endpgm")
    return a.text(), a.vmax
```

```python
from dsl import *
from gen_k1 import *

K2_LDS = 135168
T_SAFE = 64.0
def gen_k2(name):
    a = Asm()
    sWS = 8
    sWv = 3
    sRB, sHP = 32, 33
    sT0, sT1, sT2, sT3 = 40, 41, 42, 43
    sEXV = 36
    sTile = 38
    sCnt = 39
    a.valloc(1)
    vL = a.valloc(1); vL16 = a.valloc(1)
    t0 = a.valloc(1); t1 = a.valloc(1); t2 = a.valloc(1); t3 = a.valloc(1)
    vKa = a.valloc(1); vVa = a.valloc(1)
    vM = a.valloc(1)
    Q = a.valloc(4, 4)
    Cb = a.valloc(16, 4)
    S = [a.valloc(16, 4), a.valloc(16, 4)]
    P = a.valloc(8, 4)
    O = a.valloc(16, 4)
    KF = [a.valloc(4, 4), a.valloc(4, 4)]
    VF = [a.valloc(8, 4), a.valloc(8, 4)]
    NR = a.valloc(4, 4)

    a.e("s_cmp_ge_u32 s2, 256")
    a.e(f"s_cbranch_scc1 {name}_end")
    a.stamp(True); a.stamp()
    a.e(f"s_load_dwordx2 s[{P_WS}:{P_WS+1}], s[0:1], 88")
    a.e(f"v_and_b32 {v(vL)}, 63, v0")
    a.e(f"v_lshrrev_b32 {v(t0)}, 6, v0")
    a.e(f"v_lshlrev_b32 {v(vL16)}, 4, {v(vL)}")
    a.e(f"v_readfirstlane_b32 s{sWv}, {v(t0)}")
    decode_wg(a, sRB, sHP, sT0, sT1)
    a.e(f"s_lshl_b32 s{sT0}, s{sRB}, 2")
    a.e(f"s_lshr_b32 s{sT1}, s{sWv}, 1")
    a.e(f"s_add_u32 s{sT0}, s{sT0}, s{sT1}")
    a.e(f"s_lshl_b32 s{sT0}, s{sT0}, 5")
    a.e(f"s_lshl_b32 s{sT1}, s{sHP}, 1")
    a.e(f"s_add_u32 s{sT0}, s{sT0}, s{sT1}")
    a.e(f"s_and_b32 s{sT1}, s{sWv}, 1")
    a.e(f"s_add_u32 s{sT0}, s{sT0}, s{sT1}")
    a.e(f"s_lshl_b32 s{sTile}, s{sT0}, 10")
    a.e(f"s_mov_b32 s{sEXV}, 0x0000ffff")
    a.e(f"s_mov_b32 s{sEXV+1}, 0x0000ffff")
    a.e(f"s_lshl_b32 s{sT2}, s{sWv}, 10")
    a.e("s_waitcnt lgkmcnt(0)")
    srd(a, sWS, P_WS, WS_SIZE)
    def dma(i, tag):
        a.e(f"s_add_u32 m0, s{sT2}, {i*8192}")
        a.e(f"s_add_u32 s{sT1}, s{sT2}, {WS_KV + i*8192}")
        a.vm(f"buffer_load_dwordx4 {v(vL16)}, s[{sWS}:{sWS+3}], s{sT1} offen lds", tag)
    a.vm(f"buffer_load_dwordx4 {v(Q,4)}, {v(vL16)}, s[{sWS}:{sWS+3}], s{sTile} offen" + (f" offset:{WS_QF}" if WS_QF else ""), "q")
    for i in range(3): dma(i, "p1")
    a.e(f"v_lshlrev_b32 {v(t0)}, 3, {v(vL)}")
    a.e(f"s_mov_b32 s{sT0}, {WS_KN}")
    a.vm(f"buffer_load_dwordx2 {v(NR,2)}, {v(t0)}, s[{sWS}:{sWS+3}], s{sT0} offen", "nr")
    a.vm(f"buffer_load_dwordx2 {v(NR+2,2)}, {v(t0)}, s[{sWS}:{sWS+3}], s{sT0} offen offset:{WS_VN-WS_KN}", "nr")
    for i in range(3, 16): dma(i, "p2")
    a.e(f"v_mov_b32 {v(vKa)}, {v(vL16)}")
    a.e(f"v_lshrrev_b32 {v(t0)}, 5, {v(vL)}")
    a.e(f"v_lshlrev_b32 {v(t0)}, 8, {v(t0)}")
    a.e(f"v_and_b32 {v(t1)}, 15, {v(vL)}")
    a.e(f"v_lshl_add_u32 {v(vVa)}, {v(t1)}, 4, {v(t0)}")
    a.e(f"v_add_u32 {v(vVa)}, 1024, {v(vVa)}")
    a.e(f"v_and_b32 {v(t0)}, 27, {v(vL)}")
    a.e(f"v_cmp_eq_u32 vcc, 16, {v(t0)}")
    a.e(f"v_mov_b32 {v(t1)}, 0x3f803f80")
    a.e(f"v_mov_b32 {v(t2)}, 0")
    a.e(f"v_cndmask_b32 {v(t0)}, {v(t2)}, {v(t1)}, vcc")
    for b in range(2):
        for i in range(8):
            a.e(f"v_mov_b32 {v(VF[b]+i)}, {v(t0)}")
    for i in range(16):
        a.e(f"v_mov_b32 {v(O+i)}, 0")
    a.wait_vm("q")
    a.e(f"v_mov_b32 {v(t3)}, 0")
    for i in range(4):
        a.e(f"v_dot2_f32_bf16 {v(t3)}, {v(Q+i)}, {v(Q+i)}, {v(t3)}")
        a.e("s_nop 3")
    a.e(f"v_mov_b32 {v(t2)}, {v(t3)}")
    a.e("s_nop 1")
    a.e(f"v_permlane32_swap_b32 {v(t3)}, {v(t2)}")
    a.e("s_nop 1")
    a.e(f"v_add_f32 {v(t3)}, {v(t3)}, {v(t2)}")
    a.wait_vm("nr")
    a.e(f"v_max_f32 {v(NR)}, {v(NR)}, {v(NR+1)}")
    a.e(f"v_max_f32 {v(NR+2)}, {v(NR+2)}, {v(NR+3)}")
    for r, tmp in ((NR, NR+1), (NR+2, NR+3)):
        a.e(f"v_mov_b32 {v(tmp)}, {v(r)}")
        a.e("s_nop 1")
        a.e(f"v_permlane16_swap_b32 {v(r)}, {v(tmp)}")
        a.e("s_nop 1")
        a.e(f"v_max_f32 {v(r)}, {v(r)}, {v(tmp)}")
        a.e(f"v_mov_b32 {v(tmp)}, {v(r)}")
        a.e("s_nop 1")
        a.e(f"v_permlane32_swap_b32 {v(r)}, {v(tmp)}")
        a.e("s_nop 1")
        a.e(f"v_max_f32 {v(r)}, {v(r)}, {v(tmp)}")
        for sh in (8, 4, 2, 1):
            a.e("s_nop 1")
            a.e(f"v_max_f32_dpp {v(r)}, {v(r)}, {v(r)} row_ror:{sh} row_mask:0xf bank_mask:0xf")
    a.e(f"v_mul_f32 {v(t3)}, {v(t3)}, {v(NR)}")
    a.e(f"v_mul_f32 {v(t3)}, {f2u(1.03):#x}, {v(t3)}")
    a.stamp()
    a.wait_vm("p1")
    a.e("s_barrier")
    a.stamp()
    a.lds(f"ds_read_b128 {v(KF[0],4)}, {v(vKa)}", "K0")
    a.lds(f"ds_read_b128 {v(KF[1],4)}, {v(vKa)} offset:2048", "K1")
    a.e(f"s_mov_b64 exec, s[{sEXV}:{sEXV+1}]")
    a.lds(f"ds_read_b128 {v(VF[0],4)}, {v(vVa)}", "V0")
    a.lds(f"ds_read_b128 {v(VF[0]+4,4)}, {v(vVa)} offset:512", "V0")
    a.e("s_mov_b64 exec, -1")
    a.wait_lds("K0")
    a.e(f"v_mfma_f32_32x32x16_bf16 {v(S[1],16)}, {v(KF[0],4)}, {v(Q,4)}, 0")
    a.e("s_nop 15")
    def tilemax(Sr, dst, tmp):
        a.e(f"v_max3_f32 {v(dst)}, {v(Sr)}, {v(Sr+1)}, {v(Sr+2)}")
        for k in range(3, 15, 2):
            a.e(f"v_max3_f32 {v(dst)}, {v(dst)}, {v(Sr+k)}, {v(Sr+k+1)}")
        a.e(f"v_max_f32 {v(dst)}, {v(dst)}, {v(Sr+15)}")
        a.e(f"v_mov_b32 {v(tmp)}, {v(dst)}")
        a.e("s_nop 1")
        a.e(f"v_permlane32_swap_b32 {v(dst)}, {v(tmp)}")
        a.e("s_nop 1")
        a.e(f"v_max_f32 {v(dst)}, {v(dst)}, {v(tmp)}")
    tilemax(S[1], vM, t0)
    for i in range(16):
        a.e(f"v_sub_f32 {v(Cb+i)}, 0, {v(vM)}")
    a.e(f"v_add_f32 {v(t0)}, {f2u(T_SAFE):#x}, {v(vM)}")
    a.e(f"v_mul_f32 {v(t1)}, {v(t0)}, {v(t0)}")
    a.e(f"v_cmp_le_f32 s[70:71], 0, {v(t0)}")
    a.e(f"v_cmp_le_f32 s[72:73], {v(t3)}, {v(t1)}")
    a.e(f"v_mov_b32 {v(t1)}, {f2u(2.0**40):#x}")
    a.e(f"v_cmp_le_f32 s[74:75], {v(NR+2)}, {v(t1)}")
    a.e("s_nop 3")
    a.e("s_and_b64 s[70:71], s[70:71], s[72:73]")
    a.e("s_and_b64 s[70:71], s[70:71], s[74:75]")
    a.e("s_cmp_eq_u64 s[70:71], -1")
    a.e(f"s_cbranch_scc0 {name}_slow")
    a.e(f"v_mfma_f32_32x32x16_bf16 {v(S[0],16)}, {v(KF[0],4)}, {v(Q,4)}, {v(Cb,16)}")
    a.e(f"s_mov_b32 s{sCnt}, 0")
    for i in range(4, 8):
        a.e(f"v_mov_b32 {v(P+i)}, 0")
    a.e("s_waitcnt lgkmcnt(0)")
    a.stamp()
    a.lds_q = []
    a.raw(".p2align 6")
    a.label(f"{name}_loop")
    UN = 8
    for u in range(UN):
        cur = u & 1; nxt = cur ^ 1
        off = u * 2048
        a.e(f"s_waitcnt lgkmcnt(2)")
        a.e(f"v_mfma_f32_32x32x16_bf16 {v(S[nxt],16)}, {v(KF[nxt],4)}, {v(Q,4)}, {v(Cb,16)}")
        a.e(f"ds_read_b128 {v(KF[cur],4)}, {v(vKa)} offset:{off + 4096}")
        for i in range(0, 5):
            a.e(f"v_exp_f32 {v(S[cur]+i)}, {v(S[cur]+i)}")
        a.e(f"v_mfma_f32_32x32x16_bf16 {v(O,16)}, {v(VF[nxt]+4,4)}, {v(P+4,4)}, {v(O,16)}")
        a.e(f"s_mov_b64 exec, s[{sEXV}:{sEXV+1}]")
        a.e(f"ds_read_b128 {v(VF[nxt],4)}, {v(vVa)} offset:{off + 2048}")
        a.e(f"ds_read_b128 {v(VF[nxt]+4,4)}, {v(vVa)} offset:{off + 2048 + 512}")
        a.e("s_mov_b64 exec, -1")
        for i in range(5, 8):
            a.e(f"v_exp_f32 {v(S[cur]+i)}, {v(S[cur]+i)}")
        for i in range(4):
            a.e(f"v_cvt_pk_bf16_f32 {v(P+i)}, {v(S[cur]+2*i)}, {v(S[cur]+2*i+1)}")
        for i in range(8, 10):
            a.e(f"v_exp_f32 {v(S[cur]+i)}, {v(S[cur]+i)}")
        a.e(f"s_waitcnt lgkmcnt(3)")
        a.e(f"v_mfma_f32_32x32x16_bf16 {v(O,16)}, {v(VF[cur],4)}, {v(P,4)}, {v(O,16)}")
        for i in range(10, 16):
            a.e(f"v_exp_f32 {v(S[cur]+i)}, {v(S[cur]+i)}")
        for i in range(4, 8):
            a.e(f"v_cvt_pk_bf16_f32 {v(P+i)}, {v(S[cur]+2*i)}, {v(S[cur]+2*i+1)}")
        if u == UN - 1:
            a.e(f"v_add_u32 {v(vKa)}, {UN*2048}, {v(vKa)}")
            a.e(f"v_add_u32 {v(vVa)}, {UN*2048}, {v(vVa)}")
    a.e(f"s_cmp_lg_u32 s{sCnt}, 0")
    a.e(f"s_cbranch_scc1 {name}_nobar")
    a.e("s_waitcnt vmcnt(0)")
    a.e("s_barrier")
    a.label(f"{name}_nobar")
    a.e(f"s_add_u32 s{sCnt}, s{sCnt}, 1")
    a.e(f"s_cmp_lt_u32 s{sCnt}, {64//UN}")
    a.e(f"s_cbranch_scc1 {name}_loop")
    a.e(f"v_mfma_f32_32x32x16_bf16 {v(O,16)}, {v(VF[1]+4,4)}, {v(P+4,4)}, {v(O,16)}")
    a.e(f"s_branch {name}_fin")
    a.label(f"{name}_slow")
    a.e("s_waitcnt vmcnt(0) lgkmcnt(0)")
    a.e("s_barrier")
    a.e(f"s_mov_b32 s{sCnt}, 0")
    a.label(f"{name}_sloop")
    a.e(f"ds_read_b128 {v(KF[0],4)}, {v(vKa)}")
    a.e(f"s_mov_b64 exec, s[{sEXV}:{sEXV+1}]")
    a.e(f"ds_read_b128 {v(VF[0],4)}, {v(vVa)}")
    a.e(f"ds_read_b128 {v(VF[0]+4,4)}, {v(vVa)} offset:512")
    a.e("s_mov_b64 exec, -1")
    a.e("s_waitcnt lgkmcnt(0)")
    a.e(f"v_mfma_f32_32x32x16_bf16 {v(S[0],16)}, {v(KF[0],4)}, {v(Q,4)}, 0")
    a.e("s_nop 15")
    tilemax(S[0], t1, t0)
    a.e(f"v_max_f32 {v(t1)}, {v(t1)}, {v(vM)}")
    a.e(f"v_sub_f32 {v(t2)}, {v(vM)}, {v(t1)}")
    a.e(f"v_exp_f32 {v(t2)}, {v(t2)}")
    a.e(f"v_mov_b32 {v(vM)}, {v(t1)}")
    for i in range(16):
        a.e(f"v_mul_f32 {v(O+i)}, {v(O+i)}, {v(t2)}")
    for i in range(16):
        a.e(f"v_sub_f32 {v(S[0]+i)}, {v(S[0]+i)}, {v(vM)}")
    for i in range(16):
        a.e(f"v_exp_f32 {v(S[0]+i)}, {v(S[0]+i)}")
    a.e("s_nop 0")
    for i in range(8):
        a.e(f"v_cvt_pk_bf16_f32 {v(P+i)}, {v(S[0]+2*i)}, {v(S[0]+2*i+1)}")
    a.e(f"v_add_u32 {v(vKa)}, 2048, {v(vKa)}")
    a.e(f"v_add_u32 {v(vVa)}, 2048, {v(vVa)}")
    a.e(f"v_mfma_f32_32x32x16_bf16 {v(O,16)}, {v(VF[0],4)}, {v(P,4)}, {v(O,16)}")
    a.e(f"v_mfma_f32_32x32x16_bf16 {v(O,16)}, {v(VF[0]+4,4)}, {v(P+4,4)}, {v(O,16)}")
    a.e("s_nop 15")
    a.e(f"s_add_u32 s{sCnt}, s{sCnt}, 1")
    a.e(f"s_cmp_lt_u32 s{sCnt}, 64")
    a.e(f"s_cbranch_scc1 {name}_sloop")
    a.label(f"{name}_fin")
    a.e("s_nop 15")
    a.stamp()
    a.e(f"v_rcp_f32 {v(t0)}, {v(O+8)}")
    a.e("s_nop 0")
    for j in range(8):
        a.e(f"v_mul_f32 {v(O+j)}, {v(O+j)}, {v(t0)}")
    for i in range(4):
        a.e(f"v_cvt_pk_bf16_f32 {v(P+i)}, {v(O+2*i)}, {v(O+2*i+1)}")
    a.e(f"s_add_u32 s{sTile}, s{sTile}, {WS_OF + 0x200000}")
    a.e(f"buffer_store_dwordx4 {v(P,4)}, {v(vL16)}, s[{sWS}:{sWS+3}], s{sTile} offen")
    a.stamp(); a.stamp(True)
    a.dump_stamps(1, sWv, sWS, KF[0], vL, sT0)
    a.label(f"{name}_end")
    a.e("s_endpgm")
    return a.text(), a.vmax
```

```python
from dsl import *
from gen_k1 import *

RS = 272
K3_LDS = 4 * 64 * RS
def gen_k3(name):
    a = Asm()
    sWS, sOUT = 8, 12
    sWv = 3
    sPB, sNB = 32, 33
    sT0, sT1, sT2, sT3 = 40, 41, 42, 43
    sO0, sO1, sW0 = 34, 35, 36
    a.valloc(1)
    vL = a.valloc(1); vL16 = a.valloc(1); t0 = a.valloc(1); t1 = a.valloc(1); t2 = a.valloc(1); vG = a.valloc(2, 2)
    ACC = [[a.valloc(16, 4) for _ in range(2)] for _ in range(2)]
    NB = 11
    BUF = [a.valloc(16, 4) for _ in range(NB)]
    a.e("s_cmp_ge_u32 s2, 256")
    a.e(f"s_cbranch_scc1 {name}_end")
    a.stamp(True); a.stamp()
    a.e(f"s_load_dwordx2 s[{P_WS}:{P_WS+1}], s[0:1], 88")
    a.e(f"s_load_dwordx2 s[{P_OUT}:{P_OUT+1}], s[0:1], 72")
    a.e(f"v_and_b32 {v(vL)}, 63, v0")
    a.e(f"v_lshrrev_b32 {v(t0)}, 6, v0")
    a.e(f"v_lshlrev_b32 {v(vL16)}, 4, {v(vL)}")
    a.e(f"v_readfirstlane_b32 s{sWv}, {v(t0)}")
    a.e(f"s_and_b32 s{sT0}, s2, 7")
    a.e(f"s_lshr_b32 s{sT1}, s2, 3")
    a.e(f"s_lshr_b32 s{sPB}, s{sT0}, 1")
    a.e(f"s_lshl_b32 s{sPB}, s{sPB}, 3")
    a.e(f"s_and_b32 s{sNB}, s{sT1}, 7")
    a.e(f"s_add_u32 s{sPB}, s{sPB}, s{sNB}")
    a.e(f"s_and_b32 s{sNB}, s{sT0}, 1")
    a.e(f"s_lshl_b32 s{sNB}, s{sNB}, 2")
    a.e(f"s_lshr_b32 s{sT1}, s{sT1}, 3")
    a.e(f"s_add_u32 s{sNB}, s{sNB}, s{sT1}")
    a.e(f"s_lshr_b32 s{sT0}, s{sWv}, 1")
    a.e(f"s_and_b32 s{sT1}, s{sWv}, 1")
    a.e(f"s_lshl_b32 s{sO0}, s{sT0}, 21")
    a.e(f"s_lshl_b32 s{sT2}, s{sPB}, 16")
    a.e(f"s_add_u32 s{sO0}, s{sO0}, s{sT2}")
    a.e(f"s_lshl_b32 s{sT2}, s{sT1}, 14")
    a.e(f"s_add_u32 s{sO0}, s{sO0}, s{sT2}")
    a.e(f"s_add_u32 s{sO0}, s{sO0}, {WS_OF}")
    a.e(f"s_add_u32 s{sO1}, s{sO0}, 32768")
    a.e(f"s_lshl_b32 s{sW0}, s{sWv}, 18")
    a.e(f"s_lshl_b32 s{sT2}, s{sNB}, 11")
    a.e(f"s_add_u32 s{sW0}, s{sW0}, s{sT2}")
    a.e(f"s_add_u32 s{sW0}, s{sW0}, {WS_WF}")
    a.e("s_waitcnt lgkmcnt(0)")
    srd(a, sWS, P_WS, WS_SIZE)
    srd(a, sOUT, P_OUT, 2048*1024)
    def loads(k):
        b = BUF[k % NB]
        a.vm(f"buffer_load_dwordx4 {v(b,4)}, {v(vL16)}, s[{sWS}:{sWS+3}], s{sW0} offen", f"k{k}")
        a.vm(f"buffer_load_dwordx4 {v(b+4,4)}, {v(vL16)}, s[{sWS}:{sWS+3}], s{sW0} offen offset:1024", f"k{k}")
        o = (k & 3) * 1024
        a.vm(f"buffer_load_dwordx4 {v(b+8,4)}, {v(vL16)}, s[{sWS}:{sWS+3}], s{sO0} offen offset:{o}", f"k{k}")
        a.vm(f"buffer_load_dwordx4 {v(b+12,4)}, {v(vL16)}, s[{sWS}:{sWS+3}], s{sO1} offen offset:{o}", f"k{k}")
        a.e(f"s_add_u32 s{sW0}, s{sW0}, 16384")
        if (k & 3) == 3:
            a.e(f"s_add_u32 s{sO0}, s{sO0}, 4096")
            a.e(f"s_add_u32 s{sO1}, s{sO1}, 4096")
    for k in range(NB): loads(k)
    a.e(f"v_lshrrev_b32 {v(t0)}, 2, v0")
    a.e(f"v_lshlrev_b32 {v(t0)}, 2, {v(t0)}")
    a.e(f"s_lshl_b32 s{sT0}, s{sPB}, 8")
    a.e(f"s_add_u32 s{sT0}, s{sT0}, {WS_G}")
    a.vm(f"buffer_load_dword {v(vG)}, {v(t0)}, s[{sWS}:{sWS+3}], s{sT0} offen", "g")
    a.stamp()
    for k in range(16):
        b = BUF[k % NB]
        a.wait_vm(f"k{k}")
        if k == 0: a.stamp()
        for nt in range(2):
            for pt in range(2):
                D = ACC[nt][pt]
                Cc = "0" if k == 0 else v(D, 16)
                a.e(f"v_mfma_f32_32x32x16_bf16 {v(D,16)}, {v(b+4*nt,4)}, {v(b+8+4*pt,4)}, {Cc}")
        if k + NB < 16:
            loads(k + NB)
    a.e("s_nop 15")
    a.stamp()
    a.e(f"v_and_b32 {v(t0)}, 31, {v(vL)}")
    a.e(f"v_mul_u32_u24 {v(t0)}, {RS}, {v(t0)}")
    a.e(f"v_lshrrev_b32 {v(t1)}, 5, {v(vL)}")
    a.e(f"v_lshl_add_u32 {v(t0)}, {v(t1)}, 4, {v(t0)}")
    a.e(f"s_mul_i32 s{sT0}, s{sWv}, {64*RS}")
    a.e(f"v_add_u32 {v(t0)}, s{sT0}, {v(t0)}")
    for nt in range(2):
        for pt in range(2):
            for j in range(4):
                a.e(f"ds_write_b128 {v(t0)}, {v(ACC[nt][pt]+4*j,4)} offset:{pt*32*RS + nt*128 + j*32}")
    a.e("s_waitcnt lgkmcnt(0)")
    a.e("s_barrier")
    a.e(f"v_lshrrev_b32 {v(t0)}, 2, v0")
    a.e(f"v_mul_u32_u24 {v(t1)}, {RS}, {v(t0)}")
    a.e(f"v_and_b32 {v(t2)}, 3, v0")
    a.e(f"v_lshl_add_u32 {v(t1)}, {v(t2)}, 6, {v(t1)}")
    R = BUF[0]
    assert BUF[3] + 16 - BUF[0] == 64
    for w in range(4):
        for j in range(4):
            a.e(f"ds_read_b128 {v(R+16*w+4*j,4)}, {v(t1)} offset:{w*64*RS + j*16}")
    a.e(f"v_lshlrev_b32 {v(t0)}, 10, {v(t0)}")
    a.e(f"v_lshl_add_u32 {v(t0)}, {v(t2)}, 5, {v(t0)}")
    a.e(f"s_lshl_b32 s{sT0}, s{sPB}, 16")
    a.e(f"s_lshl_b32 s{sT1}, s{sNB}, 7")
    a.e(f"s_add_u32 s{sT0}, s{sT0}, s{sT1}")
    a.e("s_waitcnt vmcnt(0)")
    a.e(f"v_sub_f32 {v(vG+1)}, 1.0, {v(vG)}")
    a.e("s_waitcnt lgkmcnt(8)")
    for i in range(16):
        a.e(f"v_add_f32 {v(R+i)}, {v(R+i)}, {v(R+16+i)}")
    for i in range(16):
        a.e(f"v_mul_f32 {v(R+i)}, {v(R+i)}, {v(vG)}")
    a.e("s_waitcnt lgkmcnt(0)")
    for i in range(16):
        a.e(f"v_add_f32 {v(R+32+i)}, {v(R+32+i)}, {v(R+48+i)}")
    for i in range(16):
        a.e(f"v_fmac_f32 {v(R+i)}, {v(R+32+i)}, {v(vG+1)}")
    for i in range(8):
        a.e(f"v_cvt_pk_bf16_f32 {v(R+16+i)}, {v(R+2*i)}, {v(R+2*i+1)}")
    a.e(f"buffer_store_dwordx4 {v(R+16,4)}, {v(t0)}, s[{sOUT}:{sOUT+3}], s{sT0} offen")
    a.e(f"buffer_store_dwordx4 {v(R+20,4)}, {v(t0)}, s[{sOUT}:{sOUT+3}], s{sT0} offen offset:16")
    a.stamp(); a.stamp(True)
    a.dump_stamps(2, sWv, sWS, R+32, vL, sT0)
    a.label(f"{name}_end")
    a.e("s_endpgm")
    return a.text(), a.vmax
```

```python
class Asm:
    def __init__(self):
        self.lines = []
        self.lds_q = []
        self.vm_q = []
        self.nv = 0
        self.vmax = 0
    def e(self, s):
        self.lines.append("    " + s)
    def c(self, s):
        self.lines.append("    ; " + s)
    def label(self, s):
        self.lines.append(s + ":")
    def raw(self, s):
        self.lines.append(s)
    def valloc(self, n, align=1):
        if n >= 2 and align < 2: align = 2
        self.nv = (self.nv + align - 1) // align * align
        r = self.nv
        self.nv += n
        self.vmax = max(self.vmax, self.nv)
        return r
    def lds(self, s, tag=None):
        self.e(s); self.lds_q.append(tag)
    def vm(self, s, tag=None):
        self.e(s); self.vm_q.append(tag)
    def _need(self, q, tags):
        idx = -1
        for i, t in enumerate(q):
            if t in tags: idx = i
        return idx
    def wait_lds(self, *tags):
        idx = self._need(self.lds_q, tags)
        if idx < 0: return
        n = len(self.lds_q) - 1 - idx
        self.e(f"s_waitcnt lgkmcnt({min(n,15)})")
        self.lds_q = self.lds_q[idx+1:] if n <= 15 else self.lds_q[-15:]
    def wait_vm(self, *tags):
        idx = self._need(self.vm_q, tags)
        if idx < 0: return
        n = len(self.vm_q) - 1 - idx
        self.e(f"s_waitcnt vmcnt({min(n,63)})")
        self.vm_q = self.vm_q[idx+1:] if n <= 63 else self.vm_q[-63:]
    def wait_lds_all(self):
        self.e("s_waitcnt lgkmcnt(0)"); self.lds_q = []
    def wait_vm_all(self):
        self.e("s_waitcnt vmcnt(0)"); self.vm_q = []
    STAMPS = False
    def stamp(self, real=False):
        if not Asm.STAMPS: return
        n = getattr(self, "nst", 0)
        regs = getattr(self, "STREGS", list(range(78, 100)))
        self.e(("s_memrealtime" if real else "s_memtime") + f" s[100:101]")
        self.e("s_waitcnt lgkmcnt(0)")
        self.e(f"s_mov_b32 s{regs[n]}, s100")
        self.lds_q = []
        self.nst = n + 1
    def dump_stamps(self, kidx, s_wave, s_ws, vt, vl, st):
        if not Asm.STAMPS: return
        regs = getattr(self, "STREGS", list(range(78, 100)))
        self.e(f"v_mov_b32 v{vt}, 0")
        for i in range(self.nst):
            self.e(f"v_writelane_b32 v{vt}, s{regs[i]}, {i}")
        self.e(f"s_lshl_b32 s{st}, s2, 3")
        self.e(f"s_add_u32 s{st}, s{st}, s{s_wave}")
        self.e(f"s_lshl_b32 s{st}, s{st}, 8")
        self.e(f"s_add_u32 s{st}, s{st}, {0x900000 + kidx*256*8*256}")
        self.e(f"v_lshlrev_b32 v{vt+1}, 2, v{vl}")
        self.e(f"buffer_store_dword v{vt}, v{vt+1}, s[{s_ws}:{s_ws+3}], s{st} offen")
    def text(self):
        return "\n".join(self.lines) + "\n"

def v(r, n=1):
    return f"v{r}" if n == 1 else f"v[{r}:{r+n-1}]"
def s(r, n=1):
    return f"s{r}" if n == 1 else f"s[{r}:{r+n-1}]"

def kernel_header(name):
    return f""".text
.globl {name}
.p2align 8
.type {name},@function
{name}:
"""

def kernel_desc(name, nvgpr, nsgpr=102):
    nv = (nvgpr + 7) // 8 * 8
    return f""".section .rodata,"a"
.p2align 6
.amdhsa_kernel {name}
  .amdhsa_next_free_vgpr {nv}
  .amdhsa_next_free_sgpr {nsgpr}
  .amdhsa_accum_offset {nv}
  .amdhsa_group_segment_fixed_size 0
  .amdhsa_kernarg_size 96
  .amdhsa_user_sgpr_count 2
  .amdhsa_user_sgpr_kernarg_segment_ptr 1
  .amdhsa_system_sgpr_workgroup_id_x 1
.end_amdhsa_kernel
"""
```

```python
from dsl import *
import struct, math, sys

def f2u(x): return struct.unpack("<I", struct.pack("<f", x))[0]
C_SCALE = f2u(0.25 * math.log2(math.e))
NEG_BIG = f2u(-1e30)
LOG2E = f2u(math.log2(math.e))
T_SAFE = 64.0
TAGC = 0x9E3779B9

WS_KV = 0x000000
WS_EP = 0x020000
WS_F1 = 0x021000
WS_F2 = 0x022000
WS_F3 = 0x023000
WS_OA = 0x100000
WS_OB = 0x300000
WS_SIZE = 0xA00000
SPIN_MAX = 200000
OPT = {"bgprio": 0, "attprio": 0}

P_X, P_WQKV, P_AWO, P_BX, P_WQ, P_WK, P_WV, P_BWO, P_GW, P_OUT, P_DBG, P_WS = [44 + 2*i for i in range(12)]
sX, sWQ, sKW, sGW, sWS, sWQKV, sWOA, sWOB, sOUT = 8, 12, 16, 20, 24, 28, 32, 36, 40
sWv = 3
T0, T1, T2, T3 = 4, 5, 6, 7
sPB, sHQ, sPG, sKIND, sRot, sTag, sC, sCnt = 68, 69, 72, 73, 74, 75, 76, 77
sEXV = 78
sA0, sA1, sA2, sA3, sA4, sA5 = 80, 81, 82, 83, 84, 85

L_XQ = 0; L_WQ = 65536; L_KW = 131072; L_GW = 147456
L_XH = 65536; WBASE = 81920; WST = 24576
L_EXCH = 81920; L_NORM = L_XH
L_RING = 131072
L_WOA = 0; L_OA = 65536; L_WOB = 65536; L_OB = 0; L_RED = 131072
LDS_TOTAL = 163840
MF32 = "v_mfma_f32_32x32x16_bf16"

def srd(a, r, p, size):
    a.e(f"s_mov_b32 s{r}, s{p}")
    a.e(f"s_mov_b32 s{r+1}, s{p+1}")
    a.e(f"s_mov_b32 s{r+2}, {size}")
    a.e(f"s_mov_b32 s{r+3}, 0x00020000")

def wave_red(a, r, tmp, op="v_max_f32"):
    a.e(f"v_mov_b32 {v(tmp)}, {v(r)}")
    a.e("s_nop 1")
    a.e(f"v_permlane16_swap_b32 {v(r)}, {v(tmp)}")
    a.e("s_nop 1")
    a.e(f"{op} {v(r)}, {v(r)}, {v(tmp)}")
    a.e(f"v_mov_b32 {v(tmp)}, {v(r)}")
    a.e("s_nop 1")
    a.e(f"v_permlane32_swap_b32 {v(r)}, {v(tmp)}")
    a.e("s_nop 1")
    a.e(f"{op} {v(r)}, {v(r)}, {v(tmp)}")
def row_max(a, r):
    for sh in (8, 4, 2, 1):
        a.e("s_nop 1")
        a.e(f"v_max_f32_dpp {v(r)}, {v(r)}, {v(r)} row_ror:{sh} row_mask:0xf bank_mask:0xf")

def poll_flags(a, label, vaddr, soff, tmp):
    a.e(f"s_mov_b32 s{sCnt}, 0")
    a.label(label)
    a.e(f"buffer_load_dword {v(tmp)}, {v(vaddr)}, s[{sWS}:{sWS+3}], s{soff} offen sc1")
    a.e("s_waitcnt vmcnt(0)")
    a.e(f"v_cmp_ne_u32 vcc, s{sTag}, {v(tmp)}")
    a.e(f"s_add_u32 s{sCnt}, s{sCnt}, 1")
    a.e(f"s_cmp_ge_u32 s{sCnt}, {SPIN_MAX}")
    a.e(f"s_cbranch_scc1 {label}_done")
    a.e(f"s_cbranch_vccnz {label}")
    a.label(f"{label}_done")
    a.vm_q = []

def gen_fused(name):
    a = Asm()
    a.STREGS = list(range(86, 100))
    nbar = {"att": 0, "bg": 0}
    role = [None]
    def bar():
        a.e("s_barrier"); nbar[role[0]] += 1
    a.valloc(1)
    vL = a.valloc(1); vH = a.valloc(1); vI = a.valloc(1); vL16 = a.valloc(1)
    t0 = a.valloc(1); t1 = a.valloc(1); t2 = a.valloc(1); t3 = a.valloc(1)
    vXe = a.valloc(1); vXo = a.valloc(1)
    vW8 = a.valloc(1)
    vTr = a.valloc(1)
    vTo = a.valloc(1)
    vXr = [a.valloc(1) for _ in range(4)]
    common_end = a.nv

    a.e("s_cmp_ge_u32 s2, 256")
    a.e(f"s_cbranch_scc1 {name}_end")
    a.stamp(True); a.stamp()
    a.e("s_load_dwordx16 s[44:59], s[0:1], 0")
    a.e("s_load_dwordx8 s[60:67], s[0:1], 64")
    a.e(f"v_and_b32 {v(vL)}, 63, v0")
    a.e(f"v_lshrrev_b32 {v(t0)}, 6, v0")
    a.e(f"v_lshrrev_b32 {v(vH)}, 5, {v(vL)}")
    a.e(f"v_readfirstlane_b32 s{sWv}, {v(t0)}")
    a.e(f"v_and_b32 {v(vI)}, 31, {v(vL)}")
    a.e(f"v_lshlrev_b32 {v(vL16)}, 4, {v(vL)}")
    a.e(f"s_and_b32 s{T0}, s2, 7")
    a.e(f"s_lshr_b32 s{T1}, s2, 3")
    a.e(f"s_lshl_b32 s{sPB}, s{T0}, 2")
    a.e(f"s_and_b32 s{T2}, s{T1}, 3")
    a.e(f"s_add_u32 s{sPB}, s{sPB}, s{T2}")
    a.e(f"s_lshr_b32 s{sHQ}, s{T1}, 2")
    a.e(f"s_lshr_b32 s{sPG}, s{sHQ}, 1")
    a.e(f"s_and_b32 s{sKIND}, s{sHQ}, 1")
    a.e(f"s_and_b32 s{sRot}, s{T1}, 7")
    a.e(f"s_mov_b32 s{sC}, {C_SCALE:#x}")
    a.e(f"s_mov_b32 s{sEXV}, 0x0000ffff")
    a.e(f"s_mov_b32 s{sEXV+1}, 0x0000ffff")
    a.e(f"v_lshrrev_b32 {v(t0)}, 4, {v(vL)}")
    a.e(f"v_and_b32 {v(t1)}, 7, {v(vL)}")
    a.e(f"v_xor_b32 {v(t2)}, {v(t0)}, {v(t1)}")
    a.e(f"v_lshrrev_b32 {v(t3)}, 3, {v(vL)}")
    a.e(f"v_lshlrev_b32 {v(t3)}, 10, {v(t3)}")
    a.e(f"v_lshl_add_u32 {v(vXe)}, {v(t2)}, 4, {v(t3)}")
    a.e(f"v_xor_b32 {v(vXo)}, 64, {v(vXe)}")
    a.e(f"v_and_b32 {v(t0)}, 1, {v(t0)}")
    a.e(f"v_lshlrev_b32 {v(t0)}, 2, {v(t0)}")
    a.e(f"v_xor_b32 {v(t0)}, {v(t0)}, {v(t1)}")
    a.e(f"v_lshl_add_u32 {v(vW8)}, {v(t0)}, 4, {v(t3)}")
    a.e("s_waitcnt lgkmcnt(0)")
    a.e(f"s_load_dword s{sTag}, s[{P_WS}:{P_WS+1}], {WS_EP}")
    srd(a, sX, P_X, 2048*1024)
    a.e(f"s_cmp_eq_u32 s{sKIND}, 0")
    a.e(f"s_cselect_b32 s{sKW}, s{P_WK}, s{P_WV}")
    a.e(f"s_cselect_b32 s{sKW+1}, s{P_WK+1}, s{P_WV+1}")
    a.e(f"s_mov_b32 s{sKW+2}, 16384")
    a.e(f"s_mov_b32 s{sKW+3}, 0x00020000")
    for n in range(2):
        a.e(f"s_lshl_b32 s{T0}, s{sWv}, 11")
        a.e(f"s_lshl_b32 s{T1}, s{sRot}, 11")
        a.e(f"s_add_u32 s{T1}, s{T1}, s{T0}")
        if n: a.e(f"s_add_u32 s{T1}, s{T1}, 1024")
        a.e(f"s_add_u32 m0, s{T0}, {L_KW + n*1024}")
        a.e(f"s_and_b32 s{T1}, s{T1}, 16383")
        a.vm(f"buffer_load_dwordx4 {v(vL16)}, s[{sKW}:{sKW+3}], s{T1} offen lds", "job")
    a.e(f"s_lshl_b32 s{sA0}, s{sPB}, 16")
    a.e(f"s_add_u32 s{T0}, s{sWv}, s{sRot}")
    a.e(f"s_and_b32 s{T0}, s{T0}, 7")
    a.e(f"s_lshl_b32 s{T0}, s{T0}, 7")
    a.e(f"s_lshl_b32 s{T1}, s{sPG}, 14")
    a.e(f"s_add_u32 s{T0}, s{T0}, s{T1}")
    a.e(f"s_add_u32 s{T0}, s{T0}, s{sA0}")
    a.e(f"s_lshl_b32 s{T1}, s{sWv}, 13")
    a.e(f"s_lshl_b32 s{T2}, s{sPG}, 11")
    a.e(f"s_add_u32 m0, s{T1}, s{T2}")
    a.e(f"s_add_u32 s{T3}, s{T0}, 8192")
    a.vm(f"buffer_load_dwordx4 {v(vXe)}, s[{sX}:{sX+3}], s{T0} offen lds", "job")
    a.e(f"s_add_u32 m0, m0, 1024")
    a.e("s_nop 0")
    a.vm(f"buffer_load_dwordx4 {v(vXo)}, s[{sX}:{sX+3}], s{T3} offen lds", "job")
    srd(a, sWQ, P_WQ, 512*1024)
    srd(a, sWS, P_WS, WS_SIZE)
    a.e(f"s_cmp_ge_u32 s{sWv}, 4")
    a.e(f"s_cbranch_scc1 {name}_bg")
    common_vm = list(a.vm_q)
    common_nst = getattr(a, "nst", 0)

    def lane_consts():
        a.e(f"v_bfe_u32 {v(t1)}, {v(vL)}, 2, 2")
        a.e(f"v_lshlrev_b32 {v(t0)}, 7, {v(t1)}")
        a.e(f"v_lshrrev_b32 {v(t1)}, 1, {v(t1)}")
        a.e(f"v_lshl_add_u32 {v(t0)}, {v(t1)}, 6, {v(t0)}")
        a.e(f"v_bfe_u32 {v(t1)}, {v(vL)}, 4, 1")
        a.e(f"v_lshl_add_u32 {v(t0)}, {v(t1)}, 5, {v(t0)}")
        a.e(f"v_and_b32 {v(t1)}, 3, {v(vL)}")
        a.e(f"v_lshl_add_u32 {v(t0)}, {v(t1)}, 3, {v(t0)}")
        a.e(f"v_lshl_add_u32 {v(vTr)}, {v(vH)}, 10, {v(t0)}")
        a.e(f"v_lshl_add_u32 {v(vTo)}, {v(vH)}, 9, {v(t0)}")
        for k in range(4):
            a.e(f"v_add_u32 {v(t1)}, {2*k}, {v(vH)}")
            a.e(f"v_bfe_u32 {v(t2)}, {v(vI)}, 1, 3")
            a.e(f"v_xor_b32 {v(t1)}, {v(t1)}, {v(t2)}")
            a.e(f"v_lshlrev_b32 {v(t1)}, 4, {v(t1)}")
            a.e(f"v_lshl_add_u32 {v(vXr[k])}, {v(vI)}, 7, {v(t1)}")

    role[0] = "att"
    a.nv = common_end
    Q = a.valloc(8, 4)
    Cb = [a.valloc(16, 4), a.valloc(16, 4)]
    S = [a.valloc(16, 4), a.valloc(16, 4)]
    P = [a.valloc(8, 4), a.valloc(8, 4)]
    O = [a.valloc(16, 4), a.valloc(16, 4)]
    KF = [a.valloc(4, 4) for _ in range(4)]
    VF = [a.valloc(8, 4) for _ in range(4)]
    vKa = a.valloc(1); vVa = a.valloc(1); vM = [a.valloc(1), a.valloc(1)]; vQn = [a.valloc(1), a.valloc(1)]
    NR = a.valloc(2, 2)
    vWq = a.valloc(1); vXq = [a.valloc(1) for _ in range(4)]
    AQ = S[0]
    NQ = 5
    XFq = [KF[0], KF[1], KF[2], KF[3], Cb[0]]; WFq = [VF[0], VF[0] + 4, VF[1], VF[1] + 4, Cb[0] + 4]
    a.e(f"s_lshl_b32 s{sA1}, s{sHQ}, 7")
    a.e(f"s_lshl_b32 s{T1}, s{sWv}, 14")
    a.e(f"s_add_u32 s{sA1}, s{sA1}, s{T1}")
    a.e(f"s_lshl_b32 s{sA2}, s{sWv}, 11")
    for c in range(8):
        a.e(f"s_add_u32 s{T0}, s{sRot}, {c}")
        a.e(f"s_and_b32 s{T0}, s{T0}, 7")
        a.e(f"s_lshl_b32 s{T0}, s{T0}, 16")
        a.e(f"s_add_u32 s{T0}, s{T0}, s{sA1}")
        a.e(f"s_add_u32 m0, s{sA2}, {L_WQ + c*8192}")
        a.e(f"s_add_u32 s{T1}, s{T0}, 8192")
        a.vm(f"buffer_load_dwordx4 {v(vW8)}, s[{sWQ}:{sWQ+3}], s{T0} offen lds", f"h{c>>1}")
        a.e(f"s_add_u32 m0, s{sA2}, {L_WQ + c*8192 + 1024}")
        a.e("s_nop 0")
        a.vm(f"buffer_load_dwordx4 {v(vW8)}, s[{sWQ}:{sWQ+3}], s{T1} offen lds", f"h{c>>1}")
    lane_consts()
    a.e(f"s_lshr_b32 s{T0}, s{sWv}, 1")
    a.e(f"s_lshl_b32 s{T0}, s{T0}, 6")
    a.e(f"v_xor_b32 {v(vWq)}, s{T0}, {v(vTr)}")
    a.e(f"v_add_u32 {v(vWq)}, {L_WQ}, {v(vWq)}")
    a.e(f"s_and_b32 s{T0}, s{sWv}, 1")
    a.e(f"s_lshl_b32 s{T0}, s{T0}, 12")
    for k in range(4):
        a.e(f"v_add_u32 {v(vXq[k])}, s{T0}, {v(vXr[k])}")
    a.e(f"v_add_u32 {v(vKa)}, {L_RING}, {v(vL16)}")
    a.e(f"v_lshlrev_b32 {v(t0)}, 8, {v(vH)}")
    a.e(f"v_and_b32 {v(t1)}, 15, {v(vL)}")
    a.e(f"v_lshl_add_u32 {v(vVa)}, {v(t1)}, 4, {v(t0)}")
    a.e(f"v_add_u32 {v(vVa)}, {L_RING + 1024}, {v(vVa)}")
    for b in range(2):
        for i in range(16):
            a.e(f"v_mov_b32 {v(O[b]+i)}, 0")
        for i in range(4, 8):
            a.e(f"v_mov_b32 {v(P[b]+i)}, 0")
    a.wait_vm("job")
    a.e("s_waitcnt lgkmcnt(0)")
    bar()
    a.stamp()
    def qreads(ks):
        b = ks % NQ; c = ks >> 2; k = ks & 3
        a.lds(f"ds_read_b128 {v(XFq[b],4)}, {v(vXq[k])} offset:{c*8192}", f"q{ks}")
        a.lds(f"ds_read_b64_tr_b16 {v(WFq[b],2)}, {v(vWq)} offset:{ks*2048}", f"q{ks}")
        a.lds(f"ds_read_b64_tr_b16 {v(WFq[b]+2,2)}, {v(vWq)} offset:{ks*2048+512}", f"q{ks}")
    for qt in range(4):
        a.wait_vm(f"h{qt}")
        bar()
        if qt in (0, 3): a.stamp()
        k0 = qt * 8
        for ks in range(k0, k0 + 4): qreads(ks)
        for ks in range(k0, k0 + 8):
            a.wait_lds(f"q{ks}")
            b = ks % NQ
            Cc = "0" if ks == 0 else v(AQ, 16)
            a.e(f"{MF32} {v(AQ,16)}, {v(WFq[b],4)}, {v(XFq[b],4)}, {Cc}")
            if ks + 4 < k0 + 8: qreads(ks + 4)
    bar()
    a.stamp()
    a.e(f"v_and_b32 {v(t0)}, 27, {v(vL)}")
    a.e(f"v_cmp_eq_u32 vcc, 16, {v(t0)}")
    a.e(f"v_mov_b32 {v(t1)}, 0x3f803f80")
    a.e(f"v_mov_b32 {v(t2)}, 0")
    a.e(f"v_cndmask_b32 {v(t0)}, {v(t2)}, {v(t1)}, vcc")
    for b in range(4):
        for i in range(8):
            a.e(f"v_mov_b32 {v(VF[b]+i)}, {v(t0)}")
    for i in range(16):
        a.e(f"v_mul_f32 {v(AQ+i)}, s{sC}, {v(AQ+i)}")
    for i in range(8):
        a.e(f"v_cvt_pk_bf16_f32 {v(Q+i)}, {v(AQ+2*i)}, {v(AQ+2*i+1)}")
    for b in range(2):
        a.e(f"v_mov_b32 {v(vQn[b])}, 0")
    for i in range(4):
        for b in range(2):
            a.e(f"v_dot2_f32_bf16 {v(vQn[b])}, {v(Q+4*b+i)}, {v(Q+4*b+i)}, {v(vQn[b])}")
        a.e("s_nop 2")
    for b in range(2):
        a.e(f"v_mov_b32 {v(t2)}, {v(vQn[b])}")
        a.e("s_nop 1")
        a.e(f"v_permlane32_swap_b32 {v(vQn[b])}, {v(t2)}")
        a.e("s_nop 1")
        a.e(f"v_add_f32 {v(vQn[b])}, {v(vQn[b])}, {v(t2)}")
    a.e(f"v_mov_b32 {v(t3)}, {L_NORM}")
    if OPT["attprio"]: a.e(f"s_setprio {OPT['attprio']}")
    bar(); bar()
    bar()
    a.stamp()
    def kread(t, tag=None):
        a.lds(f"ds_read_b128 {v(KF[t&3],4)}, {v(vKa)} offset:{(t&15)*2048}", tag)
    def vread(t, tag=None):
        a.lds(f"ds_read_b128 {v(VF[t&3],4)}, {v(vVa)} offset:{(t&15)*2048}", tag)
        a.lds(f"ds_read_b128 {v(VF[t&3]+4,4)}, {v(vVa)} offset:{(t&15)*2048+512}", tag)
    kread(0, "K0")
    a.lds(f"ds_read_b64 {v(NR,2)}, {v(t3)}", "NR")
    kread(1); kread(2)
    a.e(f"s_mov_b64 exec, s[{sEXV}:{sEXV+1}]")
    vread(0); vread(1)
    a.e("s_mov_b64 exec, -1")
    a.wait_lds("K0")
    for b in range(2):
        a.e(f"{MF32} {v(S[b],16)}, {v(KF[0],4)}, {v(Q+4*b,4)}, 0")
    a.e("s_nop 10")
    def tilemax(Sr, dst, tmp):
        a.e(f"v_max3_f32 {v(dst)}, {v(Sr)}, {v(Sr+1)}, {v(Sr+2)}")
        for k in range(3, 15, 2):
            a.e(f"v_max3_f32 {v(dst)}, {v(dst)}, {v(Sr+k)}, {v(Sr+k+1)}")
        a.e(f"v_max_f32 {v(dst)}, {v(dst)}, {v(Sr+15)}")
        a.e(f"v_mov_b32 {v(tmp)}, {v(dst)}")
        a.e("s_nop 1")
        a.e(f"v_permlane32_swap_b32 {v(dst)}, {v(tmp)}")
        a.e("s_nop 1")
        a.e(f"v_max_f32 {v(dst)}, {v(dst)}, {v(tmp)}")
    for b in range(2):
        tilemax(S[b], vM[b], t0)
        for i in range(16):
            a.e(f"v_sub_f32 {v(Cb[b]+i)}, 0, {v(vM[b])}")
        a.e("s_nop 0")
        a.e(f"{MF32} {v(S[b],16)}, {v(KF[0],4)}, {v(Q+4*b,4)}, {v(Cb[b],16)}")
    a.wait_lds_all()
    a.e(f"v_mov_b32 {v(t1)}, {f2u(2.0**40):#x}")
    a.e(f"v_cmp_le_f32 s[{sA0}:{sA0+1}], {v(NR+1)}, {v(t1)}")
    a.e(f"v_mul_f32 {v(t3)}, {f2u(1.03):#x}, {v(NR)}")
    for b in range(2):
        a.e(f"v_add_f32 {v(t0)}, {f2u(T_SAFE):#x}, {v(vM[b])}")
        a.e(f"v_mul_f32 {v(t1)}, {v(t0)}, {v(t0)}")
        a.e(f"v_mul_f32 {v(t2)}, {v(t3)}, {v(vQn[b])}")
        a.e(f"v_cmp_le_f32 s[{sA2}:{sA2+1}], 0, {v(t0)}")
        a.e(f"v_cmp_le_f32 s[{sA4}:{sA4+1}], {v(t2)}, {v(t1)}")
        a.e("s_nop 3")
        a.e(f"s_and_b64 s[{sA0}:{sA0+1}], s[{sA0}:{sA0+1}], s[{sA2}:{sA2+1}]")
        a.e(f"s_and_b64 s[{sA0}:{sA0+1}], s[{sA0}:{sA0+1}], s[{sA4}:{sA4+1}]")
    a.e(f"s_mov_b32 s{sCnt}, 0")
    a.e(f"s_cmp_eq_u64 s[{sA0}:{sA0+1}], -1")
    a.e(f"s_cbranch_scc0 {name}_slow")
    a.stamp()
    def ex(Sr, lo, hi):
        for i in range(lo, hi): a.e(f"v_exp_f32 {v(Sr+i)}, {v(Sr+i)}")
    def cv(Pr, Sr, lo, hi):
        for i in range(lo, hi): a.e(f"v_cvt_pk_bf16_f32 {v(Pr+i)}, {v(Sr+2*i)}, {v(Sr+2*i+1)}")
    def mf(D, A, B, C): a.e(f"{MF32} {v(D,16)}, {v(A,4)}, {v(B,4)}, {v(C,16)}")
    a.raw(".p2align 6")
    a.label(f"{name}_loop")
    for t in range(16):
        ex(S[0], 0, 6)
        mf(O[1], VF[(t-1)&3] + 4, P[1] + 4, O[1])
        if t % 2 == 0:
            a.e(f"s_mov_b64 exec, s[{sEXV}:{sEXV+1}]")
            vread(t + 2); vread(t + 3)
            a.e("s_mov_b64 exec, -1")
        ex(S[0], 6, 8); cv(P[0], S[0], 0, 4); ex(S[0], 8, 10)
        mf(O[0], VF[t&3], P[0], O[0])
        ex(S[0], 10, 16); cv(P[0], S[0], 4, 8)
        mf(S[0], KF[(t+1)&3], Q, Cb[0])
        ex(S[1], 0, 6)
        mf(O[0], VF[t&3] + 4, P[0] + 4, O[0])
        ex(S[1], 6, 8); cv(P[1], S[1], 0, 4); ex(S[1], 8, 10)
        mf(O[1], VF[t&3], P[1], O[1])
        ex(S[1], 10, 16); cv(P[1], S[1], 4, 8)
        mf(S[1], KF[(t+1)&3], Q + 4, Cb[1])
        if t % 2 == 0:
            kread(t + 3); kread(t + 4)
        else:
            a.e("s_waitcnt lgkmcnt(0)")
            if t % 4 == 3:
                if t == 15:
                    a.e(f"s_add_u32 s{sCnt}, s{sCnt}, 1")
                    a.e(f"s_cmp_lt_u32 s{sCnt}, 4")
                a.e("s_barrier")
    a.lds_q = []
    a.e(f"s_cbranch_scc1 {name}_loop")
    nbar["att"] += 16
    mf(O[1], VF[3] + 4, P[1] + 4, O[1])
    a.e(f"s_branch {name}_fin")
    a.label(f"{name}_slow")
    a.e(f"s_and_b32 s{T0}, s{sCnt}, 15")
    a.e(f"s_lshl_b32 s{T0}, s{T0}, 11")
    a.e(f"v_add_u32 {v(t2)}, s{T0}, {v(vKa)}")
    a.e(f"v_add_u32 {v(t3)}, s{T0}, {v(vVa)}")
    a.e(f"ds_read_b128 {v(KF[0],4)}, {v(t2)}")
    a.e(f"s_mov_b64 exec, s[{sEXV}:{sEXV+1}]")
    a.e(f"ds_read_b128 {v(VF[0],4)}, {v(t3)}")
    a.e(f"ds_read_b128 {v(VF[0]+4,4)}, {v(t3)} offset:512")
    a.e("s_mov_b64 exec, -1")
    a.e("s_waitcnt lgkmcnt(0)")
    for b in range(2):
        a.e(f"{MF32} {v(S[b],16)}, {v(KF[0],4)}, {v(Q+4*b,4)}, 0")
    a.e("s_nop 15")
    for b in range(2):
        tilemax(S[b], t1, t0)
        a.e(f"v_max_f32 {v(t1)}, {v(t1)}, {v(vM[b])}")
        a.e(f"v_sub_f32 {v(t2)}, {v(vM[b])}, {v(t1)}")
        a.e(f"v_exp_f32 {v(t2)}, {v(t2)}")
        a.e(f"v_mov_b32 {v(vM[b])}, {v(t1)}")
        for i in range(16):
            a.e(f"v_mul_f32 {v(O[b]+i)}, {v(O[b]+i)}, {v(t2)}")
        for i in range(16):
            a.e(f"v_sub_f32 {v(S[b]+i)}, {v(S[b]+i)}, {v(vM[b])}")
        ex(S[b], 0, 16)
        a.e("s_nop 0")
        cv(P[b], S[b], 0, 8)
        a.e("s_nop 1")
        mf(O[b], VF[0], P[b], O[b])
        mf(O[b], VF[0] + 4, P[b] + 4, O[b])
    a.e("s_nop 15")
    a.e(f"s_add_u32 s{sCnt}, s{sCnt}, 1")
    a.e(f"s_and_b32 s{T0}, s{sCnt}, 3")
    a.e(f"s_cmp_lg_u32 s{T0}, 0")
    a.e(f"s_cbranch_scc1 {name}_slow")
    a.e("s_barrier")
    a.e(f"s_cmp_lt_u32 s{sCnt}, 64")
    a.e(f"s_cbranch_scc1 {name}_slow")
    a.label(f"{name}_fin")
    a.stamp()
    def frag_offsets(swave):
        a.e(f"s_and_b32 s{T0}, s{swave}, 1")
        a.e(f"s_lshl_b32 s{T1}, s{sHQ}, 2")
        a.e(f"s_and_b32 s{T2}, s{swave}, 2")
        a.e(f"s_add_u32 s{T1}, s{T1}, s{T2}")
        a.e(f"s_lshl_b32 s{T2}, s{T0}, 5")
        a.e(f"s_add_u32 s{T1}, s{T1}, s{T2}")
        a.e(f"s_lshl_b32 s{T1}, s{T1}, 10")
        a.e(f"s_lshl_b32 s{T2}, s{sPB}, 16")
        a.e(f"s_add_u32 s{T2}, s{T2}, s{T1}")
        a.e(f"s_lshl_b32 s{T0}, s{sPB}, 7")
        a.e(f"s_lshl_b32 s{T3}, s{sHQ}, 4")
        a.e(f"s_add_u32 s{T0}, s{T0}, s{T3}")
        a.e(f"s_lshl_b32 s{T3}, s{swave}, 2")
        a.e(f"s_add_u32 s{T0}, s{T0}, s{T3}")
    frag_offsets(sWv)
    a.e(f"s_add_u32 s{T2}, s{T2}, {WS_OB}")
    a.e(f"s_add_u32 s{T0}, s{T0}, {WS_F3}")
    a.e(f"v_add_u32 {v(t3)}, s{T1}, {v(vL16)}")
    for b in range(2):
        a.e(f"v_rcp_f32 {v(t0)}, {v(O[b]+8)}")
        a.e("s_nop 0")
        for j in range(8):
            a.e(f"v_mul_f32 {v(O[b]+j)}, {v(O[b]+j)}, {v(t0)}")
        for i in range(4):
            a.e(f"v_cvt_pk_bf16_f32 {v(P[b]+i)}, {v(O[b]+2*i)}, {v(O[b]+2*i+1)}")
        a.e(f"buffer_store_dwordx4 {v(P[b],4)}, {v(vL16)}, s[{sWS}:{sWS+3}], s{T2} offen offset:{b*1024} sc1")
        a.e(f"ds_write_b128 {v(t3)}, {v(P[b],4)} offset:{L_OB + b*1024}")
    a.e(f"s_add_u32 s{sTag}, s{sTag}, {TAGC:#x}")
    a.e(f"v_mov_b32 {v(t0)}, s{sTag}")
    a.e(f"v_lshlrev_b32 {v(t1)}, 24, {v(vL)}")
    a.e("s_waitcnt vmcnt(0)")
    a.e(f"buffer_store_dword {v(t0)}, {v(t1)}, s[{sWS}:{sWS+3}], s{T0} offen sc1")
    a.stamp()
    a.vm_q = []; a.lds_q = []
    FB = [KF[0], KF[1], KF[2], KF[3], VF[0], VF[0] + 4, VF[1], VF[1] + 4]
    final_phase(a, name, "att", S[0], FB, vL, vL16, vH, vI, vTo, t0, t1, t2, t3, bar, None, None)

    role[0] = "bg"
    a.label(f"{name}_bg")
    a.vm_q = list(common_vm); a.lds_q = []
    a.nst = common_nst
    a.nv = common_end
    sU = sA5
    Aq = a.valloc(16, 4); Ak = a.valloc(16, 4); Av = a.valloc(16, 4); Hh = a.valloc(16, 4)
    M = a.valloc(24, 4)
    vG = a.valloc(1)
    ACCA = a.valloc(16, 4)
    vWg = a.valloc(1)
    free0 = a.nv
    XF = [a.valloc(4, 4), a.valloc(4, 4)]
    XH = [a.valloc(4, 4), a.valloc(4, 4)]
    WF = [[a.valloc(4, 4) for _ in range(3)] for _ in range(2)]
    vWrd = a.valloc(1)
    vXrd = [a.valloc(1) for _ in range(4)]
    vXhr = [a.valloc(1) for _ in range(4)]
    J = Aq; JX = Ak; JW = Av
    a.e(f"s_sub_u32 s{sU}, s{sWv}, 4")
    a.e(f"s_cmp_eq_u32 s{sU}, 0")
    a.e(f"s_cbranch_scc1 {name}_bg_nobulk")
    a.e(f"s_add_u32 s{T2}, s{sPG}, s{sU}")
    a.e(f"s_and_b32 s{T2}, s{T2}, 3")
    a.e(f"s_lshl_b32 s{sA1}, s{T2}, 14")
    a.e(f"s_add_u32 s{sA1}, s{sA1}, s{sA0}")
    a.e(f"s_lshl_b32 s{sA2}, s{T2}, 11")
    for c in range(8):
        a.e(f"s_add_u32 s{T0}, s{sRot}, {c}")
        a.e(f"s_and_b32 s{T0}, s{T0}, 7")
        a.e(f"s_lshl_b32 s{T0}, s{T0}, 7")
        a.e(f"s_add_u32 s{T0}, s{T0}, s{sA1}")
        a.e(f"s_add_u32 m0, s{sA2}, {c*8192}")
        a.e(f"s_add_u32 s{T1}, s{T0}, 8192")
        a.e(f"buffer_load_dwordx4 {v(vXe)}, s[{sX}:{sX+3}], s{T0} offen lds")
        a.e(f"s_add_u32 m0, s{sA2}, {c*8192 + 1024}")
        a.e("s_nop 0")
        a.e(f"buffer_load_dwordx4 {v(vXo)}, s[{sX}:{sX+3}], s{T1} offen lds")
    lane_consts()
    a.e("s_waitcnt vmcnt(16)")
    a.e(f"s_branch {name}_bg_b1")
    a.label(f"{name}_bg_nobulk")
    srd(a, sGW, P_GW, 1024)
    a.e(f"s_lshl_b32 s{T0}, s{sRot}, 7")
    a.e(f"v_add_u32 {v(t0)}, s{T0}, {v(vL16)}")
    a.e(f"v_and_b32 {v(t0)}, 1023, {v(t0)}")
    a.e(f"s_mov_b32 m0, {L_GW}")
    a.e("s_nop 0")
    a.e(f"buffer_load_dwordx4 {v(t0)}, s[{sGW}:{sGW+3}], 0 offen lds")
    lane_consts()
    jX0 = Aq + 8; jX1 = Aq + 9; jW = Aq + 10
    a.e(f"v_and_b32 {v(t0)}, 15, {v(vL)}")
    a.e(f"v_lshrrev_b32 {v(t1)}, 1, {v(t0)}")
    a.e(f"v_lshrrev_b32 {v(t2)}, 4, {v(vL)}")
    a.e(f"v_xor_b32 {v(t1)}, {v(t1)}, {v(t2)}")
    a.e(f"v_lshlrev_b32 {v(t1)}, 4, {v(t1)}")
    a.e(f"v_lshl_add_u32 {v(t1)}, {v(t0)}, 7, {v(t1)}")
    a.e(f"s_lshl_b32 s{T0}, s{sPG}, 11")
    a.e(f"v_add_u32 {v(jX0)}, s{T0}, {v(t1)}")
    a.e(f"v_xor_b32 {v(jX1)}, 64, {v(jX0)}")
    a.e(f"v_lshlrev_b32 {v(t2)}, 8, {v(t2)}")
    a.e(f"v_bfe_u32 {v(t0)}, {v(vL)}, 2, 2")
    a.e(f"v_lshl_add_u32 {v(t2)}, {v(t0)}, 5, {v(t2)}")
    a.e(f"v_and_b32 {v(t0)}, 3, {v(vL)}")
    a.e(f"v_lshl_add_u32 {v(t2)}, {v(t0)}, 3, {v(t2)}")
    a.e(f"v_add_u32 {v(jW)}, {L_KW}, {v(t2)}")
    a.e("s_waitcnt vmcnt(0)")
    a.label(f"{name}_bg_b1")
    a.vm_q = []
    srd(a, sWQKV, P_WQKV, 512*3072)
    srd(a, sWOA, P_AWO, 512*1024)
    srd(a, sWOB, P_BWO, 512*1024)
    srd(a, sOUT, P_OUT, 2048*1024)
    a.e("s_waitcnt lgkmcnt(0)")
    a.e(f"s_add_u32 s{sTag}, s{sTag}, {TAGC:#x}")
    a.STREGS = list(range(86, 100)) + list(range(44, 68))
    bar()
    a.e(f"s_cmp_lg_u32 s{sU}, 0")
    a.e(f"s_cbranch_scc1 {name}_bg_nojob")
    def jreads(s_):
        b = s_ & 3; c = s_ >> 1; u = s_ & 1
        a.lds(f"ds_read_b128 {v(JX+4*b,4)}, {v(jX1 if u else jX0)} offset:{c*8192}", f"j{s_}")
        a.lds(f"ds_read_b64_tr_b16 {v(JW+4*b,2)}, {v(jW)} offset:{s_*1024}", f"j{s_}")
        a.lds(f"ds_read_b64_tr_b16 {v(JW+4*b+2,2)}, {v(jW)} offset:{s_*1024+128}", f"j{s_}")
    for s_ in range(4): jreads(s_)
    for s_ in range(16):
        a.wait_lds(f"j{s_}")
        b = s_ & 3
        Cc = "0" if s_ == 0 else v(J, 4)
        a.e(f"v_mfma_f32_16x16x32_bf16 {v(J,4)}, {v(JW+4*b,4)}, {v(JX+4*b,4)}, {Cc}")
        if s_ + 4 < 16: jreads(s_ + 4)
    a.e(f"s_lshl_b32 s{T0}, s{sPB}, 1")
    a.e(f"s_lshr_b32 s{T1}, s{sPG}, 1")
    a.e(f"s_add_u32 s{T0}, s{T0}, s{T1}")
    a.e(f"s_lshl_b32 s{T0}, s{T0}, 11")
    if WS_KV: a.e(f"s_add_u32 s{T0}, s{T0}, {WS_KV}")
    a.e(f"s_and_b32 s{T1}, s{sPG}, 1")
    a.e(f"v_and_b32 {v(t0)}, 15, {v(vL)}")
    a.e(f"v_bfe_u32 {v(t1)}, {v(vL)}, 4, 1")
    a.e("s_nop 2")
    a.e(f"v_cvt_pk_bf16_f32 {v(J+4)}, {v(J)}, {v(J+1)}")
    a.e(f"v_cvt_pk_bf16_f32 {v(J+5)}, {v(J+2)}, {v(J+3)}")
    a.e(f"s_cmp_eq_u32 s{sKIND}, 0")
    a.e(f"s_cbranch_scc0 {name}_vkind")
    a.e(f"s_lshl_b32 s{T1}, s{T1}, 8")
    a.e(f"s_add_u32 s{T0}, s{T0}, s{T1}")
    a.e(f"v_lshlrev_b32 {v(t2)}, 4, {v(t0)}")
    a.e(f"v_lshl_add_u32 {v(t2)}, {v(t1)}, 9, {v(t2)}")
    a.e(f"v_lshl_add_u32 {v(t2)}, {v(vH)}, 3, {v(t2)}")
    a.e(f"buffer_store_dwordx2 {v(J+4,2)}, {v(t2)}, s[{sWS}:{sWS+3}], s{T0} offen sc1")
    a.e(f"v_mul_f32 {v(J+7)}, {v(J)}, {v(J)}")
    for k in range(1, 4):
        a.e(f"v_fmac_f32 {v(J+7)}, {v(J+k)}, {v(J+k)}")
    wave_red(a, J + 7, t3, "v_add_f32")
    a.e(f"s_branch {name}_jdone")
    a.label(f"{name}_vkind")
    a.e(f"s_lshl_b32 s{T1}, s{T1}, 9")
    a.e(f"s_add_u32 s{T0}, s{T0}, s{T1}")
    a.e(f"s_add_u32 s{T0}, s{T0}, 1024")
    a.e(f"v_bfe_u32 {v(t2)}, {v(t0)}, 2, 1")
    a.e(f"v_lshlrev_b32 {v(t2)}, 8, {v(t2)}")
    a.e(f"v_lshrrev_b32 {v(t3)}, 4, {v(vL)}")
    a.e(f"v_lshl_add_u32 {v(t2)}, {v(t3)}, 6, {v(t2)}")
    a.e(f"v_and_b32 {v(t3)}, 3, {v(t0)}")
    a.e(f"v_lshl_add_u32 {v(t2)}, {v(t3)}, 1, {v(t2)}")
    a.e(f"v_lshrrev_b32 {v(t3)}, 3, {v(t0)}")
    a.e(f"v_lshl_add_u32 {v(t2)}, {v(t3)}, 3, {v(t2)}")
    a.e(f"buffer_store_short {v(J+4)}, {v(t2)}, s[{sWS}:{sWS+3}], s{T0} offen sc1")
    a.e(f"buffer_store_short_d16_hi {v(J+4)}, {v(t2)}, s[{sWS}:{sWS+3}], s{T0} offen offset:16 sc1")
    a.e(f"buffer_store_short {v(J+5)}, {v(t2)}, s[{sWS}:{sWS+3}], s{T0} offen offset:32 sc1")
    a.e(f"buffer_store_short_d16_hi {v(J+5)}, {v(t2)}, s[{sWS}:{sWS+3}], s{T0} offen offset:48 sc1")
    a.e(f"v_max_f32 {v(J+7)}, abs({v(J)}), abs({v(J+1)})")
    a.e(f"v_max3_f32 {v(J+7)}, {v(J+7)}, abs({v(J+2)}), abs({v(J+3)})")
    wave_red(a, J + 7, t3)
    a.label(f"{name}_jdone")
    row_max(a, J + 7)
    a.e(f"v_mov_b32 {v(J+6)}, s{sTag}")
    a.e(f"s_lshl_b32 s{T0}, s{sPB}, 6")
    a.e(f"s_lshl_b32 s{T1}, s{sHQ}, 3")
    a.e(f"s_add_u32 s{T0}, s{T0}, s{T1}")
    a.e(f"s_add_u32 s{T0}, s{T0}, {WS_F1}")
    a.e(f"v_lshlrev_b32 {v(t1)}, 24, {v(vL)}")
    a.e("s_waitcnt vmcnt(0)")
    a.e(f"buffer_store_dwordx2 {v(J+6,2)}, {v(t1)}, s[{sWS}:{sWS+3}], s{T0} offen sc1")
    a.label(f"{name}_bg_nojob")
    a.stamp()
    a.e(f"v_lshlrev_b32 {v(t0)}, 2, {v(vH)}")
    a.e(f"v_sub_u32 {v(t0)}, {v(vI)}, {v(t0)}")
    a.e(f"s_and_b32 s{T0}, s{sU}, 1")
    a.e(f"s_or_b32 s{T0}, s{sPB}, s{T0}")
    a.e(f"s_cmp_eq_u32 s{T0}, 0")
    a.e(f"s_cselect_b32 s{T0}, 0x1020, 32")
    a.e(f"v_add_u32 {v(t1)}, s{T0}, {v(t0)}")
    vNeg = Hh; vZero = Hh + 1; tt = Hh + 4
    a.e(f"v_mov_b32 {v(vNeg)}, {NEG_BIG:#x}")
    a.e(f"v_mov_b32 {v(vZero)}, 0")
    MS = [4, 6]
    regs = [(r, t0, M + r) for r in range(16)] + [(r, t1, M + 16 + (r - 8)) for r in range(8, 16)]
    for g0 in range(0, 24, 2):
        grp = regs[g0:g0+2]
        for k, (r, base, dst) in enumerate(grp):
            rc = (r & 3) + 8 * (r >> 2)
            a.e(f"v_subrev_u32 {v(tt+k)}, {rc}, {v(base)}")
            a.e(f"v_and_b32 {v(tt+k)}, 0xfffffff1, {v(tt+k)}")
            a.e(f"v_cmp_eq_u32 s[{MS[k]}:{MS[k]+1}], 0, {v(tt+k)}")
        a.e("s_nop 1")
        for k, (r, base, dst) in enumerate(grp):
            a.e(f"v_cndmask_b32 {v(dst)}, {v(vNeg)}, {v(vZero)}, s[{MS[k]}:{MS[k]+1}]")
    a.e(f"s_lshr_b32 s{T0}, s{sU}, 1")
    a.e(f"s_lshl_b32 s{T0}, s{T0}, 6")
    a.e(f"v_xor_b32 {v(vWrd)}, s{T0}, {v(vTr)}")
    a.e(f"v_add_u32 {v(vWrd)}, {WBASE}, {v(vWrd)}")
    a.e(f"s_and_b32 s{T0}, s{sU}, 1")
    a.e(f"s_lshl_b32 s{T0}, s{T0}, 12")
    for k in range(4):
        a.e(f"v_add_u32 {v(vXrd[k])}, s{T0}, {v(vXr[k])}")
        a.e(f"v_and_b32 {v(vXhr[k])}, 0xfffff7ff, {v(vXr[k])}")
        a.e(f"v_add_u32 {v(vXhr[k])}, {L_XH}, {v(vXhr[k])}")
    a.e(f"v_lshrrev_b32 {v(t0)}, 3, {v(vL)}")
    a.e(f"v_lshl_add_u32 {v(vWg)}, {v(t0)}, 11, {v(vW8)}")
    a.e(f"s_mul_i32 s{T0}, s{sU}, {16*3072}")
    a.e(f"s_lshl_b32 s{T1}, s{sHQ}, 7")
    a.e(f"s_add_u32 s{T0}, s{T0}, s{T1}")
    a.e(f"v_add_u32 {v(vWg)}, s{T0}, {v(vWg)}")
    GX = [Ak, Ak + 4, Ak + 8, Ak + 12]; GWf = [Av, Av + 4, Av + 8, Av + 12]
    vGx = [Aq + 8 + k for k in range(4)]; vGw = Aq + 12
    a.e(f"s_lshr_b32 s{T0}, s{sU}, 1")
    a.e(f"s_lshl_b32 s{T0}, s{T0}, 12")
    for k in range(4):
        a.e(f"v_add_u32 {v(vGx[k])}, s{T0}, {v(vXr[k])}")
    a.e(f"v_lshlrev_b32 {v(vGw)}, 4, {v(vH)}")
    a.e(f"v_add_u32 {v(vGw)}, {L_GW}, {v(vGw)}")
    a.e(f"v_mov_b32 {v(vG)}, 0")
    a.e(f"v_mov_b32 {v(Aq+13)}, 0")
    def greads(ks):
        b = ks & 3
        a.lds(f"ds_read_b128 {v(GX[b],4)}, {v(vGx[ks&3])} offset:{(ks>>2)*8192}", f"g{ks}")
        a.lds(f"ds_read_b128 {v(GWf[b],4)}, {v(vGw)} offset:{ks*32}", f"g{ks}")
    for qt in range(4):
        a.e(f"s_waitcnt vmcnt({12 - 4*qt})")
        bar()
        k0 = qt * 8
        for ks in range(k0, k0 + 4): greads(ks)
        for ks in range(k0, k0 + 8):
            a.wait_lds(f"g{ks}")
            b = ks & 3
            for i in range(4):
                acc = vG if i % 2 == 0 else Aq + 13
                a.e(f"v_dot2_f32_bf16 {v(acc)}, {v(GX[b]+i)}, {v(GWf[b]+i)}, {v(acc)}")
            if ks + 4 < k0 + 8: greads(ks + 4)
    bar()
    a.vm_q = []
    a.stamp()
    if OPT["bgprio"]: a.e(f"s_setprio {OPT['bgprio']}")
    sU1k, sU2k = sA3, sA4
    a.e(f"s_lshl_b32 s{sU1k}, s{sU}, 10")
    a.e(f"s_lshl_b32 s{sU2k}, s{sU}, 11")
    def w_dma(c):
        st = c & 1
        a.e(f"s_add_u32 s{T2}, s{sRot}, {c}")
        a.e(f"s_and_b32 s{T2}, s{T2}, 7")
        a.e(f"s_mul_i32 s{T3}, s{T2}, {64*3072}")
        for kind in range(3):
            for n in range(2):
                a.e(f"s_add_u32 m0, s{sU2k}, {WBASE + st*WST + kind*8192 + n*1024}")
                a.e(f"s_add_u32 s{T1}, s{T3}, {kind*1024 + n*8*3072}")
                a.vm(f"buffer_load_dwordx4 {v(vWg)}, s[{sWQKV}:{sWQKV+3}], s{T1} offen lds", f"g{c}")
    def kv_dma(i):
        for n in range(2):
            a.e(f"s_add_u32 m0, s{sU1k}, {L_RING + (i&3)*8192 + n*4096}")
            a.e(f"s_add_u32 s{T1}, s{sU1k}, {WS_KV + i*8192 + n*4096}")
            a.vm(f"buffer_load_dwordx4 {v(vL16)}, s[{sWS}:{sWS+3}], s{T1} offen sc1 lds", f"kv{i}")
    w_dma(0)
    a.e(f"s_sub_u32 s{T0}, s{sA0}, 16384")
    a.e(f"s_cmp_eq_u32 s{sPB}, 0")
    a.e(f"s_cselect_b32 s{T0}, 0, s{T0}")
    for n in range(2):
        a.e(f"s_lshl_b32 s{T2}, s{sU}, 1")
        a.e(f"s_add_u32 s{T2}, s{T2}, s{sRot}")
        if n: a.e(f"s_add_u32 s{T2}, s{T2}, 1")
        a.e(f"s_and_b32 s{T2}, s{T2}, 7")
        a.e(f"s_lshl_b32 s{T2}, s{T2}, 7")
        a.e(f"s_add_u32 s{T2}, s{T2}, s{T0}")
        a.e(f"s_lshl_b32 s{T3}, s{sU}, 12")
        a.e(f"s_add_u32 m0, s{T3}, {L_XH + n*2048}")
        a.e(f"s_add_u32 s{T1}, s{T2}, 8192")
        a.vm(f"buffer_load_dwordx4 {v(vXe)}, s[{sX}:{sX+3}], s{T2} offen lds", "g0")
        a.e(f"s_add_u32 m0, s{T3}, {L_XH + n*2048 + 1024}")
        a.e("s_nop 0")
        a.vm(f"buffer_load_dwordx4 {v(vXo)}, s[{sX}:{sX+3}], s{T1} offen lds", "g0")
    w_dma(1)
    a.e(f"v_add_f32 {v(vG)}, {v(vG)}, {v(Aq+13)}")
    a.e(f"v_mov_b32 {v(t0)}, {v(vG)}")
    a.e("s_nop 1")
    a.e(f"v_permlane32_swap_b32 {v(vG)}, {v(t0)}")
    a.e("s_nop 1")
    a.e(f"v_add_f32 {v(vG)}, {v(vG)}, {v(t0)}")
    a.e(f"v_mul_f32 {v(vG)}, {(LOG2E ^ 0x80000000):#x}, {v(vG)}")
    a.e(f"v_exp_f32 {v(vG)}, {v(vG)}")
    a.e("s_nop 0")
    a.e(f"v_add_f32 {v(vG)}, 1.0, {v(vG)}")
    a.e(f"v_rcp_f32 {v(vG)}, {v(vG)}")
    sHK = 70
    a.e(f"s_and_b32 s{T0}, s{sU}, 1")
    a.e(f"s_sub_u32 s{sHK}, 0, s{T0}")
    a.e(f"s_mov_b32 s{sHK+1}, s{sHK}")
    lbl = [0]
    def greads2(sn):
        c = sn >> 2; p = sn & 3; st = c & 1; se = sn & 1
        a.lds(f"ds_read_b128 {v(XF[se],4)}, {v(vXrd[p])} offset:{c*8192}", f"X{sn}")
        for t in range(3):
            a.lds(f"ds_read_b64_tr_b16 {v(WF[se][t],2)}, {v(vWrd)} offset:{st*WST + t*8192 + p*2048}", f"W{t}_{sn}")
            a.lds(f"ds_read_b64_tr_b16 {v(WF[se][t]+2,2)}, {v(vWrd)} offset:{st*WST + t*8192 + p*2048 + 512}", f"W{t}_{sn}")
        a.lds(f"ds_read_b128 {v(XH[se],4)}, {v(vXhr[p])} offset:{c*2048}", f"XH{sn}")
    def gmf(sn):
        se = sn & 1; first = sn == 0
        X = XF[se]; W = WF[se]
        def big(D, A, B, tags):
            a.wait_lds(*tags)
            Cc = "0" if first else v(D, 16)
            a.e(f"{MF32} {v(D,16)}, {v(A,4)}, {v(B,4)}, {Cc}")
        big(Aq, W[0], X, (f"X{sn}", f"W0_{sn}"))
        big(Ak, W[1], X, (f"W1_{sn}",))
        big(Av, X, W[2], (f"W2_{sn}",))
        a.wait_lds(f"XH{sn}")
        lbl[0] += 1
        a.e(f"s_cbranch_vccnz {name}_hv{lbl[0]}")
        big(Hh, W[1], XH[se], ())
        a.e(f"s_branch {name}_hd{lbl[0]}")
        a.label(f"{name}_hv{lbl[0]}")
        big(Hh, XH[se], W[2], ())
        a.label(f"{name}_hd{lbl[0]}")
    def gemm_chunk(c):
        a.e(f"s_mov_b64 vcc, s[{sHK}:{sHK+1}]")
        greads2(4 * c)
        for sn in range(4 * c, 4 * c + 4):
            if sn + 1 < 4 * c + 4: greads2(sn + 1)
            gmf(sn)
    a.wait_vm("g0")
    bar()
    gemm_chunk(0)
    a.wait_vm("g1")
    a.wait_lds_all()
    bar()
    w_dma(2)
    gemm_chunk(1)
    a.stamp()
    FL = a.valloc(8, 4)
    a.e(f"v_lshlrev_b32 {v(t0)}, 5, {v(vL)}")
    a.e(f"s_mov_b32 s{T0}, {WS_F1}")
    a.e(f"s_mov_b32 s{sCnt}, 0")
    a.label(f"{name}_poll1")
    a.e(f"buffer_load_dwordx4 {v(FL,4)}, {v(t0)}, s[{sWS}:{sWS+3}], s{T0} offen sc1")
    a.e(f"buffer_load_dwordx4 {v(FL+4,4)}, {v(t0)}, s[{sWS}:{sWS+3}], s{T0} offen offset:16 sc1")
    a.e("s_waitcnt vmcnt(0)")
    a.e(f"v_xor_b32 {v(t1)}, s{sTag}, {v(FL)}")
    a.e(f"v_xor_b32 {v(t2)}, s{sTag}, {v(FL+2)}")
    a.e(f"v_or_b32 {v(t1)}, {v(t1)}, {v(t2)}")
    a.e(f"v_xor_b32 {v(t2)}, s{sTag}, {v(FL+4)}")
    a.e(f"v_xor_b32 {v(t3)}, s{sTag}, {v(FL+6)}")
    a.e(f"v_or3_b32 {v(t1)}, {v(t1)}, {v(t2)}, {v(t3)}")
    a.e(f"v_cmp_ne_u32 vcc, 0, {v(t1)}")
    a.e(f"s_add_u32 s{sCnt}, s{sCnt}, 1")
    a.e(f"s_cmp_ge_u32 s{sCnt}, {SPIN_MAX}")
    a.e(f"s_cbranch_scc1 {name}_poll1_done")
    a.e(f"s_cbranch_vccnz {name}_poll1")
    a.label(f"{name}_poll1_done")
    a.vm_q = []
    a.stamp()
    for i in range(3): kv_dma(i)
    a.e(f"v_mov_b32 {v(t1)}, 0x7f800000")
    for r in (FL + 1, FL + 3, FL + 5, FL + 7):
        a.e(f"v_cmp_u_f32 vcc, {v(r)}, {v(r)}")
        a.e("s_nop 1")
        a.e(f"v_cndmask_b32 {v(r)}, {v(r)}, {v(t1)}, vcc")
    a.e(f"v_max_f32 {v(FL)}, {v(FL+1)}, {v(FL+5)}")
    a.e(f"v_max_f32 {v(FL+1)}, {v(FL+3)}, {v(FL+7)}")
    for r in (FL, FL + 1):
        wave_red(a, r, t1)
        row_max(a, r)
    a.e(f"v_mov_b32 {v(t1)}, {L_NORM}")
    a.lds(f"ds_write_b64 {v(t1)}, {v(FL,2)}")
    a.e(f"s_or_b32 s{T0}, s2, s{sU}")
    a.e(f"s_cmp_lg_u32 s{T0}, 0")
    a.e(f"s_cbranch_scc1 {name}_noep")
    a.e(f"v_mov_b32 {v(t2)}, s{sTag}")
    a.e(f"v_lshlrev_b32 {v(t1)}, 24, {v(vL)}")
    a.e(f"s_mov_b32 s{T0}, {WS_EP}")
    a.e(f"buffer_store_dword {v(t2)}, {v(t1)}, s[{sWS}:{sWS+3}], s{T0} offen sc1")
    a.e("s_waitcnt vmcnt(0)")
    a.label(f"{name}_noep")
    a.wait_vm("kv1")
    a.wait_lds_all()
    bar()
    a.stamp()
    def step_end(i, extra_tags=()):
        tags = list(extra_tags)
        if i + 2 <= 15: tags.append(f"kv{i+2}")
        a.wait_vm(*tags)
        a.wait_lds_all()
        if OPT.get("stepstamps"): a.stamp()
        bar()
    for i in range(6):
        kv_dma(i + 3)
        if i + 3 <= 7: w_dma(i + 3)
        gemm_chunk(i + 2)
        step_end(i, (f"g{i+3}",) if i + 3 <= 7 else ())
    a.nv = free0
    Kf = a.valloc(8, 4); Vf = a.valloc(8, 4); Qf = a.valloc(8, 4); Kp = a.valloc(8, 4); Vp = a.valloc(4, 4)
    PP = a.valloc(20, 4); ONES = a.valloc(4, 4)
    vA = a.valloc(1); mx = a.valloc(1); mt = a.valloc(1); vWo = a.valloc(1)
    kv_dma(9)
    a.e(f"s_lshl_b32 s{T1}, s{sHQ}, 7")
    a.e(f"s_lshl_b32 s{T3}, s{sU}, 17")
    a.e(f"s_add_u32 s{T1}, s{T1}, s{T3}")
    a.e(f"v_add_u32 {v(vWo)}, s{T1}, {v(vW8)}")
    sWoL = sA1
    a.e(f"s_lshl_b32 s{sWoL}, s{sU}, 14")
    def wo_dma(srdr, lbase, tag):
        for n in range(16):
            a.e(f"s_add_u32 m0, s{sWoL}, {lbase + n*1024}")
            a.e(f"s_mov_b32 s{T1}, {n*8192}")
            a.vm(f"buffer_load_dwordx4 {v(vWo)}, s[{srdr}:{srdr+3}], s{T1} offen lds", tag)
    wo_dma(sWOA, L_WOA, "woa")
    for i in range(8):
        a.e(f"v_cvt_pk_bf16_f32 {v(Kf+i)}, {v(Ak+2*i)}, {v(Ak+2*i+1)}")
    for i in range(8):
        a.e(f"v_cvt_pk_bf16_f32 {v(Vf+i)}, {v(Av+2*i)}, {v(Av+2*i+1)}")
    for i in range(8):
        a.e(f"v_cvt_pk_bf16_f32 {v(Kp+i)}, {v(Hh+2*i)}, {v(Hh+2*i+1)}")
    a.e(f"s_lshl_b32 s{T0}, s{sU}, 12")
    a.e(f"s_add_u32 s{T0}, s{T0}, {L_EXCH}")
    a.e(f"v_add_u32 {v(vA)}, s{T0}, {v(vL16)}")
    a.lds(f"ds_write_b128 {v(vA)}, {v(Kf,4)}")
    a.lds(f"ds_write_b128 {v(vA)}, {v(Kf+4,4)} offset:1024")
    a.lds(f"ds_write_b128 {v(vA)}, {v(Vf+4,4)} offset:2048")
    a.lds(f"ds_write_b128 {v(vA)}, {v(Kp+4,4)} offset:3072")
    a.e(f"v_xor_b32 {v(vA)}, 4096, {v(vA)}")
    for i in range(16):
        a.e(f"v_mul_f32 {v(Aq+i)}, s{sC}, {v(Aq+i)}")
    for i in range(8):
        a.e(f"v_cvt_pk_bf16_f32 {v(Qf+i)}, {v(Aq+2*i)}, {v(Aq+2*i+1)}")
    for i in range(4):
        a.e(f"v_mov_b32 {v(ONES+i)}, 0x3f803f80")
    step_end(6)
    kv_dma(10)
    a.e(f"s_bitcmp1_b32 s{sU}, 0")
    a.e(f"s_cbranch_scc1 {name}_ex1")
    a.e(f"ds_read_b128 {v(Vp,4)}, {v(vA)} offset:3072")
    a.e(f"s_branch {name}_ex2")
    a.label(f"{name}_ex1")
    a.e(f"ds_read_b128 {v(Kp,4)}, {v(vA)}")
    a.e(f"ds_read_b128 {v(Kp+4,4)}, {v(vA)} offset:1024")
    a.e(f"ds_read_b128 {v(Vp,4)}, {v(vA)} offset:2048")
    a.label(f"{name}_ex2")
    frag_offsets(sU)
    sOA, sF2 = sA2, 71
    a.e(f"s_add_u32 s{sOA}, s{T2}, {WS_OA}")
    a.e(f"s_add_u32 s{sF2}, s{T0}, {WS_F2}")
    a.e("s_waitcnt lgkmcnt(0)")
    def lattn(hd):
        Sc = Aq; Sp = Ak; On = Av; Lr = Hh
        a.e(f"{MF32} {v(Sc,16)}, {v(Kf+4*hd,4)}, {v(Qf+4*hd,4)}, {v(M,16)}")
        a.e(f"{MF32} {v(Sp,16)}, {v(Kp+4*hd,4)}, {v(Qf+4*hd,4)}, {v(M+8,16)}")
        a.e("s_nop 11")
        vals = [Sc + r for r in range(16)] + [Sp + r for r in range(8, 16)]
        a.e(f"v_max3_f32 {v(mx)}, {v(vals[0])}, {v(vals[1])}, {v(vals[2])}")
        k = 3
        while k < 24:
            if k + 1 < 24:
                a.e(f"v_max3_f32 {v(mx)}, {v(mx)}, {v(vals[k])}, {v(vals[k+1])}"); k += 2
            else:
                a.e(f"v_max_f32 {v(mx)}, {v(mx)}, {v(vals[k])}"); k += 1
        a.e(f"v_mov_b32 {v(mt)}, {v(mx)}")
        a.e("s_nop 1")
        a.e(f"v_permlane32_swap_b32 {v(mx)}, {v(mt)}")
        a.e("s_nop 1")
        a.e(f"v_max_f32 {v(mx)}, {v(mx)}, {v(mt)}")
        for r in vals: a.e(f"v_sub_f32 {v(r)}, {v(r)}, {v(mx)}")
        for r in vals: a.e(f"v_exp_f32 {v(r)}, {v(r)}")
        a.e("s_nop 0")
        for i in range(12):
            a.e(f"v_cvt_pk_bf16_f32 {v(PP+i)}, {v(vals[2*i])}, {v(vals[2*i+1])}")
        a.e("s_nop 1")
        a.e(f"{MF32} {v(On,16)}, {v(Vf,4)}, {v(PP,4)}, 0")
        a.e(f"{MF32} {v(Lr,16)}, {v(ONES,4)}, {v(PP,4)}, 0")
        a.e(f"{MF32} {v(On,16)}, {v(Vf+4,4)}, {v(PP+4,4)}, {v(On,16)}")
        a.e(f"{MF32} {v(Lr,16)}, {v(ONES,4)}, {v(PP+4,4)}, {v(Lr,16)}")
        a.e(f"{MF32} {v(On,16)}, {v(Vp,4)}, {v(PP+8,4)}, {v(On,16)}")
        a.e(f"{MF32} {v(Lr,16)}, {v(ONES,4)}, {v(PP+8,4)}, {v(Lr,16)}")
        a.e("s_nop 15")
        a.e(f"v_rcp_f32 {v(mx)}, {v(Lr)}")
        a.e("s_nop 0")
        for j in range(8):
            a.e(f"v_mul_f32 {v(On+8*hd+j)}, {v(On+8*hd+j)}, {v(mx)}")
        for i in range(4):
            a.e(f"v_cvt_pk_bf16_f32 {v(PP+12+4*hd+i)}, {v(On+8*hd+2*i)}, {v(On+8*hd+2*i+1)}")
        a.vm(f"buffer_store_dwordx4 {v(PP+12+4*hd,4)}, {v(vL16)}, s[{sWS}:{sWS+3}], s{sOA} offen offset:{hd*1024} sc1", "oa")
    lattn(0)
    step_end(7)
    kv_dma(11)
    lattn(1)
    step_end(8)
    kv_dma(12)
    a.e(f"v_mov_b32 {v(t0)}, s{sTag}")
    a.e(f"v_lshlrev_b32 {v(t1)}, 24, {v(vL)}")
    a.wait_vm("oa")
    a.vm(f"buffer_store_dword {v(t0)}, {v(t1)}, s[{sWS}:{sWS+3}], s{sF2} offen sc1", "f2")
    step_end(9)
    kv_dma(13)
    step_end(10)
    kv_dma(14)
    a.e(f"s_lshl_b32 s{T0}, s{sPB}, 7")
    a.e(f"s_lshl_b32 s{T1}, s{sU}, 5")
    a.e(f"s_add_u32 s{T0}, s{T0}, s{T1}")
    a.e(f"s_add_u32 s{T0}, s{T0}, {WS_F2}")
    a.e(f"v_and_b32 {v(t0)}, 7, {v(vL)}")
    a.e(f"v_lshlrev_b32 {v(t0)}, 2, {v(t0)}")
    poll_flags(a, f"{name}_poll2", t0, T0, t1)
    a.e(f"s_lshl_b32 s{T0}, s{sU}, 13")
    a.e(f"s_add_u32 s{T2}, s{sA0}, s{T0}")
    a.e(f"s_add_u32 s{T2}, s{T2}, {WS_OA}")
    for pt in range(2):
        for hh in range(8):
            a.e(f"s_add_u32 m0, s{T0}, {L_OA + pt*32768 + hh*1024}")
            a.e(f"s_add_u32 s{T1}, s{T2}, {pt*32768 + hh*1024}")
            a.vm(f"buffer_load_dwordx4 {v(vL16)}, s[{sWS}:{sWS+3}], s{T1} offen sc1 lds", "oag")
    vAw = vA; vAo = mx
    a.e(f"s_and_b32 s{T0}, s{sU}, 1")
    a.e(f"s_lshl_b32 s{T0}, s{T0}, 6")
    a.e(f"v_xor_b32 {v(vAw)}, s{T0}, {v(vTo)}")
    a.e(f"s_lshr_b32 s{T0}, s{sU}, 1")
    a.e(f"s_lshl_b32 s{T0}, s{T0}, 15")
    a.e(f"s_add_u32 s{T0}, s{T0}, {L_OA}")
    a.e(f"v_add_u32 {v(vAo)}, s{T0}, {v(vL16)}")
    step_end(11, ("oag",))
    AB = [(Kf, Kf + 4), (Vf, Vf + 4), (Qf, Qf + 4), (Kp, Kp + 4)]
    def areads(ks):
        o_, w_ = AB[ks & 3]
        a.lds(f"ds_read_b128 {v(o_,4)}, {v(vAo)} offset:{ks*1024}", f"a{ks}")
        a.lds(f"ds_read_b64_tr_b16 {v(w_,2)}, {v(vAw)} offset:{L_WOA + ks*2048}", f"a{ks}")
        a.lds(f"ds_read_b64_tr_b16 {v(w_+2,2)}, {v(vAw)} offset:{L_WOA + ks*2048 + 1024}", f"a{ks}")
    for half in range(2):
        if half == 0: kv_dma(15)
        k0 = 16 * half
        for ks in range(k0, k0 + 3): areads(ks)
        for ks in range(k0, k0 + 16):
            if ks + 3 < k0 + 16: areads(ks + 3)
            a.wait_lds(f"a{ks}")
            o_, w_ = AB[ks & 3]
            Cc = "0" if ks == 0 else v(ACCA, 16)
            a.e(f"{MF32} {v(ACCA,16)}, {v(w_,4)}, {v(o_,4)}, {Cc}")
        step_end(12 + half)
    wo_dma(sWOB, L_WOB, "wob")
    step_end(14)
    step_end(15, ("wob",))
    a.stamp()
    a.vm_q = []; a.lds_q = []
    FB = [Kf, Kf + 4, Vf, Vf + 4, Qf, Qf + 4, Kp, Kp + 4]
    final_phase(a, name, "bg", Aq, FB, vL, vL16, vH, vI, vTo, t0, t1, t2, t3, bar, ACCA, vG)
    a.label(f"{name}_end")
    a.e("s_endpgm")
    assert nbar["att"] == nbar["bg"], nbar
    print("barriers", nbar, file=sys.stderr)
    return a.text(), a.vmax

def final_phase(a, name, role, ACCB, FB, vL, vL16, vH, vI, vTo, t0, t1, t2, t3, bar, ACCA, vG):
    L = f"{name}_{role}"
    a.e(f"s_cmp_eq_u32 s{sWv}, s{sHQ}")
    a.e(f"s_cbranch_scc1 {L}_nogather")
    a.e(f"s_lshl_b32 s{T0}, s{sPB}, 7")
    a.e(f"s_lshl_b32 s{T1}, s{sWv}, 4")
    a.e(f"s_add_u32 s{T0}, s{T0}, s{T1}")
    a.e(f"s_add_u32 s{T0}, s{T0}, {WS_F3}")
    a.e(f"v_and_b32 {v(t0)}, 3, {v(vL)}")
    a.e(f"v_lshlrev_b32 {v(t0)}, 2, {v(t0)}")
    poll_flags(a, f"{L}_poll3", t0, T0, t1)
    a.e(f"s_lshl_b32 s{T0}, s{sWv}, 12")
    a.e(f"s_lshl_b32 s{T2}, s{sPB}, 16")
    a.e(f"s_add_u32 s{T2}, s{T2}, s{T0}")
    a.e(f"s_add_u32 s{T2}, s{T2}, {WS_OB}")
    for pt in range(2):
        for hh in range(4):
            a.e(f"s_add_u32 m0, s{T0}, {L_OB + pt*32768 + hh*1024}")
            a.e(f"s_add_u32 s{T1}, s{T2}, {pt*32768 + hh*1024}")
            a.e(f"buffer_load_dwordx4 {v(vL16)}, s[{sWS}:{sWS+3}], s{T1} offen sc1 lds")
    a.label(f"{L}_nogather")
    a.e(f"s_and_b32 s{T0}, s{sWv}, 1")
    a.e(f"s_lshl_b32 s{T0}, s{T0}, 6")
    a.e(f"v_xor_b32 {v(t2)}, s{T0}, {v(vTo)}")
    a.e(f"s_lshr_b32 s{T1}, s{sWv}, 2")
    a.e(f"s_lshl_b32 s{T0}, s{T1}, 15")
    a.e(f"s_add_u32 s{T0}, s{T0}, {L_WOB}")
    a.e(f"v_add_u32 {v(t2)}, s{T0}, {v(t2)}")
    a.e(f"s_bfe_u32 s{T0}, s{sWv}, 0x10001")
    a.e(f"s_lshl_b32 s{T0}, s{T0}, 15")
    a.e(f"s_lshl_b32 s{T1}, s{T1}, 14")
    a.e(f"s_add_u32 s{T0}, s{T0}, s{T1}")
    a.e(f"v_add_u32 {v(t3)}, s{T0}, {v(vL16)}")
    a.e("s_waitcnt vmcnt(0) lgkmcnt(0)")
    bar()
    a.stamp()
    def rd(ks):
        b = ks & 3
        a.lds(f"ds_read_b128 {v(FB[2*b],4)}, {v(t3)} offset:{L_OB + ks*1024}", f"f{ks}")
        a.lds(f"ds_read_b64_tr_b16 {v(FB[2*b+1],2)}, {v(t2)} offset:{ks*2048}", f"f{ks}")
        a.lds(f"ds_read_b64_tr_b16 {v(FB[2*b+1]+2,2)}, {v(t2)} offset:{ks*2048+1024}", f"f{ks}")
    for ks in range(4): rd(ks)
    for ks in range(16):
        a.wait_lds(f"f{ks}")
        b = ks & 3
        Cc = "0" if ks == 0 else v(ACCB, 16)
        a.e(f"{MF32} {v(ACCB,16)}, {v(FB[2*b+1],4)}, {v(FB[2*b],4)}, {Cc}")
        if ks + 4 < 16: rd(ks + 4)
    a.e(f"s_and_b32 s{T0}, s{sWv}, 3")
    a.e(f"s_lshl_b32 s{T0}, s{T0}, 12")
    a.e(f"s_add_u32 s{T0}, s{T0}, {L_RED}")
    a.e(f"v_add_u32 {v(t3)}, s{T0}, {v(vL16)}")
    if role == "att":
        a.e("s_nop 12")
        for i in range(4):
            a.e(f"ds_write_b128 {v(t3)}, {v(ACCB+4*i,4)} offset:{i*1024}")
        a.e("s_waitcnt lgkmcnt(0)")
        bar()
        a.stamp(); a.stamp(True)
        a.dump_stamps(0, sWv, sWS, FB[0], vL, T0)
        a.e("s_endpgm")
        return
    a.e(f"v_sub_f32 {v(t1)}, 1.0, {v(vG)}")
    for i in range(16):
        a.e(f"v_mul_f32 {v(ACCA+i)}, {v(ACCA+i)}, {v(vG)}")
    a.e(f"v_lshlrev_b32 {v(t0)}, 10, {v(vI)}")
    a.e(f"v_lshl_add_u32 {v(t0)}, {v(vH)}, 4, {v(t0)}")
    a.e(f"s_lshl_b32 s{T0}, s{sPB}, 16")
    a.e(f"s_bfe_u32 s{T1}, s{sWv}, 0x10001")
    a.e(f"s_lshl_b32 s{T1}, s{T1}, 15")
    a.e(f"s_add_u32 s{T0}, s{T0}, s{T1}")
    a.e(f"s_lshl_b32 s{T1}, s{sHQ}, 7")
    a.e(f"s_add_u32 s{T0}, s{T0}, s{T1}")
    a.e(f"s_and_b32 s{T1}, s{sWv}, 1")
    a.e(f"s_lshl_b32 s{T1}, s{T1}, 6")
    a.e(f"s_add_u32 s{T0}, s{T0}, s{T1}")
    for i in range(16):
        a.e(f"v_fmac_f32 {v(ACCA+i)}, {v(ACCB+i)}, {v(t1)}")
    bar()
    R = FB[0]
    for i in range(4):
        a.e(f"ds_read_b128 {v(R+4*i,4)}, {v(t3)} offset:{i*1024}")
    for i in range(4):
        a.e(f"s_waitcnt lgkmcnt({3-i})")
        for k in range(4):
            a.e(f"v_fmac_f32 {v(ACCA+4*i+k)}, {v(R+4*i+k)}, {v(t1)}")
    for i in range(8):
        a.e(f"v_cvt_pk_bf16_f32 {v(R+i)}, {v(ACCA+2*i)}, {v(ACCA+2*i+1)}")
    a.e("s_nop 1")
    for jj in range(2):
        a.e(f"v_permlane32_swap_b32 {v(R+4*jj)}, {v(R+4*jj+2)}")
        a.e(f"v_permlane32_swap_b32 {v(R+4*jj+1)}, {v(R+4*jj+3)}")
    a.e("s_nop 1")
    for jj in range(2):
        a.e(f"buffer_store_dwordx4 {v(R+4*jj,4)}, {v(t0)}, s[{sOUT}:{sOUT+3}], s{T0} offen offset:{jj*32}")
    a.stamp(); a.stamp(True)
    a.dump_stamps(0, sWv, sWS, R + 8, vL, T0)

NAME = "gated_mix__sliding_local_dilated__grouped_kv_mqa__prompt"
def build():
    head = open(f"cdna_kernels/{NAME}.s.ref").read().splitlines()
    hdr = [l for l in head if l.startswith(";") and "@launch" not in l and "Override launch" not in l and "grid=ceil" not in l]
    out = "\n".join(hdr) + "\n"
    n = NAME + "_kernel"
    out += f"; @launch grid=(256,1,1) block=(512,1,1) lds={LDS_TOTAL}\n"
    out += '.amdgcn_target "amdgcn-amd-amdhsa--gfx950"\n'
    body, nv = gen_fused(n)
    out += kernel_header(n) + body + kernel_desc(n, nv)
    print("vgprs", nv, "lines", len(body.splitlines()), file=sys.stderr)
    return out
if __name__ == "__main__":
    if "--stamps" in sys.argv:
        Asm.STAMPS = True; sys.argv.remove("--stamps")
    for x in list(sys.argv[1:]):
        if "=" in x:
            k_, v_ = x.split("="); OPT[k_] = int(v_); sys.argv.remove(x)
    dst = sys.argv[1] if len(sys.argv) > 1 else f"cdna_kernels/{NAME}.s"
    open(dst, "w").write(build())
```

```python
from dsl import *
import struct, math, sys

def f2u(x): return struct.unpack("<I", struct.pack("<f", x))[0]
C_SCALE = f2u(0.25 * math.log2(math.e))
NEG_BIG = f2u(-1e30)
LOG2E = f2u(math.log2(math.e))
T_SAFE = 64.0
TAGC = 0x9E3779B9

WS_KV = 0x000000
WS_EP = 0x020000
WS_F1 = 0x040000
WS_F2 = 0x060000
WS_OA = 0x100000
WS_OB = 0x380000
WS_F3 = 0x070000
WS_SIZE = 0xA00000
SPIN_MAX = 200000
OPT = {"bgprio": 0, "attprio": 0, "npre": 0, "nmid": 2, "prio2": 2, "l2pf": 1}

P_X, P_WQKV, P_AWO, P_BX, P_WQ, P_WK, P_WV, P_BWO, P_GW, P_OUT, P_DBG, P_WS = [44 + 2*i for i in range(12)]
sX, sWQ, sKW, sGW, sWS, sWQKV, sWOA, sWOB, sOUT = 8, 12, 16, 20, 24, 28, 32, 36, 40
sWv = 3
T0, T1, T2, T3 = 4, 5, 6, 7
sPB, sHQ, sPG, sKIND, sRot, sTag, sC, sCnt = 68, 69, 72, 73, 74, 75, 76, 77
sEXV = 78
sA0, sA1, sA2, sA3, sA4, sA5 = 80, 81, 82, 83, 84, 85

L_XQ = 0; L_WQ = 65536; L_KW = 131072; L_GW = 155648
L_XH = 65536; WBASE = 81920; WST = 24576
L_EXCH = 81920; L_NORM = L_XH
L_RING = 131072
L_WOA = 0; L_OA = 65536; L_WOB = 65536; L_OB = 0; L_RED = 131072
LDS_TOTAL = 163840
MF32 = "v_mfma_f32_32x32x16_bf16"

def srd(a, r, p, size):
    a.e(f"s_mov_b32 s{r}, s{p}")
    a.e(f"s_mov_b32 s{r+1}, s{p+1}")
    a.e(f"s_mov_b32 s{r+2}, {size}")
    a.e(f"s_mov_b32 s{r+3}, 0x00020000")

def wave_red(a, r, tmp, op="v_max_f32"):
    a.e(f"v_mov_b32 {v(tmp)}, {v(r)}")
    a.e("s_nop 1")
    a.e(f"v_permlane16_swap_b32 {v(r)}, {v(tmp)}")
    a.e("s_nop 1")
    a.e(f"{op} {v(r)}, {v(r)}, {v(tmp)}")
    a.e(f"v_mov_b32 {v(tmp)}, {v(r)}")
    a.e("s_nop 1")
    a.e(f"v_permlane32_swap_b32 {v(r)}, {v(tmp)}")
    a.e("s_nop 1")
    a.e(f"{op} {v(r)}, {v(r)}, {v(tmp)}")
def row_max(a, r):
    for sh in (8, 4, 2, 1):
        a.e("s_nop 1")
        a.e(f"v_max_f32_dpp {v(r)}, {v(r)}, {v(r)} row_ror:{sh} row_mask:0xf bank_mask:0xf")

def poll_flags(a, label, vaddr, soff, tmp, pre=None):
    a.e(f"s_mov_b32 s{sCnt}, 0")
    if pre is not None:
        a.vm(f"buffer_load_dword {v(tmp)}, {v(vaddr)}, s[{sWS}:{sWS+3}], s{soff} offen sc1", "pf")
        pre()
        a.wait_vm("pf")
        keep = list(a.vm_q)
        a.e(f"s_branch {label}_chk")
    a.label(label)
    a.e(f"buffer_load_dword {v(tmp)}, {v(vaddr)}, s[{sWS}:{sWS+3}], s{soff} offen sc1")
    a.e("s_waitcnt vmcnt(0)")
    a.label(f"{label}_chk")
    a.e(f"v_cmp_ne_u32 vcc, s{sTag}, {v(tmp)}")
    a.e(f"s_add_u32 s{sCnt}, s{sCnt}, 1")
    a.e(f"s_cmp_ge_u32 s{sCnt}, {SPIN_MAX}")
    a.e(f"s_cbranch_scc1 {label}_done")
    a.e(f"s_cbranch_vccz {label}_done")
    a.e("s_sleep 3")
    a.e(f"s_branch {label}")
    a.label(f"{label}_done")
    a.vm_q = keep if pre is not None else []

def s1_load(a, FL, vaddr):
    a.e(f"s_lshl_b32 s{T0}, s2, 2")
    a.e(f"s_add_u32 s{T0}, s{T0}, s{sWv}")
    a.e(f"s_and_b32 s{T0}, s{T0}, 63")
    a.e(f"s_lshl_b32 s{T0}, s{T0}, 11")
    a.e(f"s_add_u32 s{T0}, s{T0}, {WS_F1}")
    a.e(f"buffer_load_dwordx4 {v(FL,4)}, {v(vaddr)}, s[{sWS}:{sWS+3}], s{T0} offen sc1")
    a.e(f"buffer_load_dwordx4 {v(FL+4,4)}, {v(vaddr)}, s[{sWS}:{sWS+3}], s{T0} offen offset:16 sc1")

def poll_s1(a, label, FL, vaddr, t1, t2, t3, first_issued=False):
    a.e(f"s_mov_b32 s{sCnt}, 0")
    if first_issued: a.e(f"s_branch {label}_chk")
    a.label(label)
    s1_load(a, FL, vaddr)
    a.label(f"{label}_chk")
    a.e("s_waitcnt vmcnt(0)")
    a.e(f"v_xor_b32 {v(t1)}, s{sTag}, {v(FL)}")
    a.e(f"v_xor_b32 {v(t2)}, s{sTag}, {v(FL+2)}")
    a.e(f"v_or_b32 {v(t1)}, {v(t1)}, {v(t2)}")
    a.e(f"v_xor_b32 {v(t2)}, s{sTag}, {v(FL+4)}")
    a.e(f"v_xor_b32 {v(t3)}, s{sTag}, {v(FL+6)}")
    a.e(f"v_or3_b32 {v(t1)}, {v(t1)}, {v(t2)}, {v(t3)}")
    a.e(f"v_cmp_ne_u32 vcc, 0, {v(t1)}")
    a.e(f"s_add_u32 s{sCnt}, s{sCnt}, 1")
    a.e(f"s_cmp_ge_u32 s{sCnt}, {SPIN_MAX}")
    a.e(f"s_cbranch_scc1 {label}_done")
    a.e(f"s_cbranch_vccz {label}_done")
    a.e("s_sleep 2")
    a.e(f"s_branch {label}")
    a.label(f"{label}_done")
    a.vm_q = []

def gen_fused(name):
    a = Asm()
    a.STREGS = list(range(86, 100))
    nbar = {"att": 0, "bg": 0}
    role = [None]
    def bar():
        a.e("s_barrier"); nbar[role[0]] += 1
    a.valloc(1)
    vL = a.valloc(1); vH = a.valloc(1); vI = a.valloc(1); vL16 = a.valloc(1)
    t0 = a.valloc(1); t1 = a.valloc(1); t2 = a.valloc(1); t3 = a.valloc(1)
    vXe = a.valloc(1); vXo = a.valloc(1)
    vW8 = a.valloc(1)
    vTr = a.valloc(1)
    vTo = a.valloc(1)
    vXr = [a.valloc(1) for _ in range(4)]
    common_end = a.nv

    a.e("s_cmp_ge_u32 s2, 256")
    a.e(f"s_cbranch_scc1 {name}_end")
    a.stamp(True); a.stamp()
    a.e("s_load_dwordx16 s[44:59], s[0:1], 0")
    a.e("s_load_dwordx8 s[60:67], s[0:1], 64")
    a.e(f"v_and_b32 {v(vL)}, 63, v0")
    a.e(f"v_lshrrev_b32 {v(t0)}, 6, v0")
    a.e(f"v_lshrrev_b32 {v(vH)}, 5, {v(vL)}")
    a.e(f"v_readfirstlane_b32 s{sWv}, {v(t0)}")
    a.e(f"v_and_b32 {v(vI)}, 31, {v(vL)}")
    a.e(f"v_lshlrev_b32 {v(vL16)}, 4, {v(vL)}")
    a.e(f"s_and_b32 s{T0}, s2, 7")
    a.e(f"s_lshr_b32 s{T1}, s2, 3")
    a.e(f"s_lshl_b32 s{sPB}, s{T0}, 2")
    a.e(f"s_and_b32 s{T2}, s{T1}, 3")
    a.e(f"s_add_u32 s{sPB}, s{sPB}, s{T2}")
    a.e(f"s_lshr_b32 s{sHQ}, s{T1}, 2")
    a.e(f"s_lshr_b32 s{sPG}, s{sHQ}, 1")
    a.e(f"s_and_b32 s{sKIND}, s{sHQ}, 1")
    a.e(f"s_and_b32 s{sRot}, s{T1}, 7")
    a.e(f"s_mov_b32 s{sC}, {C_SCALE:#x}")
    a.e(f"s_mov_b32 s{sEXV}, 0x0000ffff")
    a.e(f"s_mov_b32 s{sEXV+1}, 0x0000ffff")
    a.e(f"v_lshrrev_b32 {v(t0)}, 4, {v(vL)}")
    a.e(f"v_and_b32 {v(t1)}, 7, {v(vL)}")
    a.e(f"v_xor_b32 {v(t2)}, {v(t0)}, {v(t1)}")
    a.e(f"v_lshrrev_b32 {v(t3)}, 3, {v(vL)}")
    a.e(f"v_lshlrev_b32 {v(t3)}, 10, {v(t3)}")
    a.e(f"v_lshl_add_u32 {v(vXe)}, {v(t2)}, 4, {v(t3)}")
    a.e(f"v_xor_b32 {v(vXo)}, 64, {v(vXe)}")
    a.e(f"v_and_b32 {v(t0)}, 1, {v(t0)}")
    a.e(f"v_lshlrev_b32 {v(t0)}, 2, {v(t0)}")
    a.e(f"v_xor_b32 {v(t0)}, {v(t0)}, {v(t1)}")
    a.e(f"v_lshl_add_u32 {v(vW8)}, {v(t0)}, 4, {v(t3)}")
    a.e("s_waitcnt lgkmcnt(0)")
    a.e(f"s_load_dword s{sTag}, s[{P_WS}:{P_WS+1}], {WS_EP}")
    srd(a, sX, P_X, 2048*1024)
    a.e(f"s_cmp_eq_u32 s{sKIND}, 0")
    a.e(f"s_cselect_b32 s{sKW}, s{P_WK}, s{P_WV}")
    a.e(f"s_cselect_b32 s{sKW+1}, s{P_WK+1}, s{P_WV+1}")
    a.e(f"s_mov_b32 s{sKW+2}, 16384")
    a.e(f"s_mov_b32 s{sKW+3}, 0x00020000")
    for n in range(2):
        a.e(f"s_lshl_b32 s{T0}, s{sWv}, 11")
        a.e(f"s_lshl_b32 s{T1}, s{sRot}, 11")
        a.e(f"s_add_u32 s{T1}, s{T1}, s{T0}")
        if n: a.e(f"s_add_u32 s{T1}, s{T1}, 1024")
        a.e(f"s_add_u32 m0, s{T0}, {L_KW + n*1024}")
        a.e(f"s_and_b32 s{T1}, s{T1}, 16383")
        a.vm(f"buffer_load_dwordx4 {v(vL16)}, s[{sKW}:{sKW+3}], s{T1} offen lds", "job")
    a.e(f"s_lshl_b32 s{sA0}, s{sPB}, 16")
    a.e(f"s_add_u32 s{T0}, s{sWv}, s{sRot}")
    a.e(f"s_and_b32 s{T0}, s{T0}, 7")
    a.e(f"s_lshl_b32 s{T0}, s{T0}, 7")
    a.e(f"s_lshl_b32 s{T1}, s{sPG}, 14")
    a.e(f"s_add_u32 s{T0}, s{T0}, s{T1}")
    a.e(f"s_add_u32 s{T0}, s{T0}, s{sA0}")
    a.e(f"s_lshl_b32 s{T1}, s{sWv}, 13")
    a.e(f"s_lshl_b32 s{T2}, s{sPG}, 11")
    a.e(f"s_add_u32 m0, s{T1}, s{T2}")
    a.e(f"s_add_u32 s{T3}, s{T0}, 8192")
    a.vm(f"buffer_load_dwordx4 {v(vXe)}, s[{sX}:{sX+3}], s{T0} offen lds", "job")
    a.e(f"s_add_u32 m0, m0, 1024")
    a.e("s_nop 0")
    a.vm(f"buffer_load_dwordx4 {v(vXo)}, s[{sX}:{sX+3}], s{T3} offen lds", "job")
    srd(a, sWQ, P_WQ, 512*1024)
    srd(a, sWS, P_WS, WS_SIZE)
    a.e(f"s_cmp_ge_u32 s{sWv}, 4")
    a.e(f"s_cbranch_scc1 {name}_bg")
    common_vm = list(a.vm_q)
    common_nst = getattr(a, "nst", 0)

    def lane_consts():
        a.e(f"v_bfe_u32 {v(t1)}, {v(vL)}, 2, 2")
        a.e(f"v_lshlrev_b32 {v(t0)}, 7, {v(t1)}")
        a.e(f"v_lshrrev_b32 {v(t1)}, 1, {v(t1)}")
        a.e(f"v_lshl_add_u32 {v(t0)}, {v(t1)}, 6, {v(t0)}")
        a.e(f"v_bfe_u32 {v(t1)}, {v(vL)}, 4, 1")
        a.e(f"v_lshl_add_u32 {v(t0)}, {v(t1)}, 5, {v(t0)}")
        a.e(f"v_and_b32 {v(t1)}, 3, {v(vL)}")
        a.e(f"v_lshl_add_u32 {v(t0)}, {v(t1)}, 3, {v(t0)}")
        a.e(f"v_lshl_add_u32 {v(vTr)}, {v(vH)}, 10, {v(t0)}")
        a.e(f"v_lshl_add_u32 {v(vTo)}, {v(vH)}, 9, {v(t0)}")
        for k in range(4):
            a.e(f"v_add_u32 {v(t1)}, {2*k}, {v(vH)}")
            a.e(f"v_bfe_u32 {v(t2)}, {v(vI)}, 1, 3")
            a.e(f"v_xor_b32 {v(t1)}, {v(t1)}, {v(t2)}")
            a.e(f"v_lshlrev_b32 {v(t1)}, 4, {v(t1)}")
            a.e(f"v_lshl_add_u32 {v(vXr[k])}, {v(vI)}, 7, {v(t1)}")

    role[0] = "att"
    a.STREGS = list(range(86, 100)) + list(range(44, 68))
    a.nv = common_end
    Q = a.valloc(8, 4)
    Cb = [a.valloc(16, 4), a.valloc(16, 4)]
    S = [a.valloc(16, 4), a.valloc(16, 4)]
    P = [a.valloc(8, 4), a.valloc(8, 4)]
    O = [a.valloc(16, 4), a.valloc(16, 4)]
    KF = [a.valloc(4, 4) for _ in range(4)]
    VF = [a.valloc(8, 4) for _ in range(4)]
    vKa = a.valloc(1); vVa = a.valloc(1); vM = [a.valloc(1), a.valloc(1)]; vQn = [a.valloc(1), a.valloc(1)]
    NR = a.valloc(2, 2)
    vWq = a.valloc(1); vXq = [a.valloc(1) for _ in range(4)]
    AQ = S[0]
    NQ = 5
    XFq = [KF[0], KF[1], KF[2], KF[3], Cb[0]]; WFq = [VF[0], VF[0] + 4, VF[1], VF[1] + 4, Cb[0] + 4]
    a.e(f"s_lshl_b32 s{sA1}, s{sHQ}, 7")
    a.e(f"s_lshl_b32 s{T1}, s{sWv}, 14")
    a.e(f"s_add_u32 s{sA1}, s{sA1}, s{T1}")
    a.e(f"s_lshl_b32 s{sA2}, s{sWv}, 11")
    def wq_dma(c):
        a.e(f"s_add_u32 s{T0}, s{sRot}, {c}")
        a.e(f"s_and_b32 s{T0}, s{T0}, 7")
        a.e(f"s_lshl_b32 s{T0}, s{T0}, 16")
        a.e(f"s_add_u32 s{T0}, s{T0}, s{sA1}")
        a.e(f"s_add_u32 m0, s{sA2}, {L_WQ + c*8192}")
        a.e(f"s_add_u32 s{T1}, s{T0}, 8192")
        a.vm(f"buffer_load_dwordx4 {v(vW8)}, s[{sWQ}:{sWQ+3}], s{T0} offen lds", f"h{c>>2}")
        a.e(f"s_add_u32 m0, s{sA2}, {L_WQ + c*8192 + 1024}")
        a.e("s_nop 0")
        a.vm(f"buffer_load_dwordx4 {v(vW8)}, s[{sWQ}:{sWQ+3}], s{T1} offen lds", f"h{c>>2}")
    NPRE = OPT["npre"]
    for c in range(NPRE): wq_dma(c)
    lane_consts()
    a.e(f"s_lshr_b32 s{T0}, s{sWv}, 1")
    a.e(f"s_lshl_b32 s{T0}, s{T0}, 6")
    a.e(f"v_xor_b32 {v(vWq)}, s{T0}, {v(vTr)}")
    a.e(f"v_add_u32 {v(vWq)}, {L_WQ}, {v(vWq)}")
    a.e(f"s_and_b32 s{T0}, s{sWv}, 1")
    a.e(f"s_lshl_b32 s{T0}, s{T0}, 12")
    for k in range(4):
        a.e(f"v_add_u32 {v(vXq[k])}, s{T0}, {v(vXr[k])}")
    a.e(f"v_add_u32 {v(vKa)}, {L_RING}, {v(vL16)}")
    a.e(f"v_lshlrev_b32 {v(t0)}, 8, {v(vH)}")
    a.e(f"v_and_b32 {v(t1)}, 15, {v(vL)}")
    a.e(f"v_lshl_add_u32 {v(vVa)}, {v(t1)}, 4, {v(t0)}")
    a.e(f"v_add_u32 {v(vVa)}, {L_RING + 1024}, {v(vVa)}")
    for b in range(2):
        for i in range(16):
            a.e(f"v_mov_b32 {v(O[b]+i)}, 0")
        for i in range(4, 8):
            a.e(f"v_mov_b32 {v(P[b]+i)}, 0")
    a.e("s_waitcnt lgkmcnt(0)")
    a.e(f"s_add_u32 s{sTag}, s{sTag}, {TAGC:#x}")
    FL = Cb[1]
    vFl = vM[0]
    a.wait_vm("job")
    bar()
    a.stamp()
    NMID = OPT["nmid"]
    for c in range(NPRE, NMID): wq_dma(c)
    bar()
    for c in range(NMID, 8): wq_dma(c)
    def qreads(ks):
        b = ks % NQ; c = ks >> 2; k = ks & 3
        a.lds(f"ds_read_b128 {v(XFq[b],4)}, {v(vXq[k])} offset:{c*8192}", f"q{ks}")
        a.lds(f"ds_read_b64_tr_b16 {v(WFq[b],2)}, {v(vWq)} offset:{ks*2048}", f"q{ks}")
        a.lds(f"ds_read_b64_tr_b16 {v(WFq[b]+2,2)}, {v(vWq)} offset:{ks*2048+512}", f"q{ks}")
    for hf in range(2):
        a.wait_vm(f"h{hf}")
        bar()
        a.stamp()
        if hf == 1:
            a.e(f"v_lshlrev_b32 {v(vFl)}, 5, {v(vL)}")
            s1_load(a, FL, vFl)
        k0 = hf * 16
        for ks in range(k0, k0 + 4): qreads(ks)
        for ks in range(k0, k0 + 16):
            a.wait_lds(f"q{ks}")
            b = ks % NQ
            Cc = "0" if ks == 0 else v(AQ, 16)
            a.e(f"{MF32} {v(AQ,16)}, {v(WFq[b],4)}, {v(XFq[b],4)}, {Cc}")
            if ks + 4 < k0 + 16: qreads(ks + 4)
    poll_s1(a, f"{name}_apoll1", FL, vFl, t1, t2, t3, first_issued=True)
    a.e(f"s_lshl_b32 s{T2}, s{sWv}, 10")
    for i in range(3):
        for n in range(2):
            a.e(f"s_add_u32 m0, s{T2}, {L_RING + i*8192 + n*4096}")
            a.e(f"s_add_u32 s{T1}, s{T2}, {WS_KV + i*8192 + n*4096}")
            a.e(f"buffer_load_dwordx4 {v(vL16)}, s[{sWS}:{sWS+3}], s{T1} offen lds")
    a.stamp()
    a.e(f"v_mov_b32 {v(t1)}, 0x7f800000")
    for r in (FL + 1, FL + 3, FL + 5, FL + 7):
        a.e(f"v_cmp_u_f32 vcc, {v(r)}, {v(r)}")
        a.e("s_nop 1")
        a.e(f"v_cndmask_b32 {v(r)}, {v(r)}, {v(t1)}, vcc")
    a.e(f"v_max_f32 {v(NR)}, {v(FL+1)}, {v(FL+5)}")
    a.e(f"v_max_f32 {v(NR+1)}, {v(FL+3)}, {v(FL+7)}")
    for r in (NR, NR + 1):
        wave_red(a, r, t1)
        row_max(a, r)
    a.e(f"v_and_b32 {v(t0)}, 27, {v(vL)}")
    a.e(f"v_cmp_eq_u32 vcc, 16, {v(t0)}")
    a.e(f"v_mov_b32 {v(t1)}, 0x3f803f80")
    a.e(f"v_mov_b32 {v(t2)}, 0")
    a.e(f"v_cndmask_b32 {v(t0)}, {v(t2)}, {v(t1)}, vcc")
    for b in range(4):
        for i in range(8):
            a.e(f"v_mov_b32 {v(VF[b]+i)}, {v(t0)}")
    for i in range(16):
        a.e(f"v_mul_f32 {v(AQ+i)}, s{sC}, {v(AQ+i)}")
    for i in range(8):
        a.e(f"v_cvt_pk_bf16_f32 {v(Q+i)}, {v(AQ+2*i)}, {v(AQ+2*i+1)}")
    for b in range(2):
        a.e(f"v_mov_b32 {v(vQn[b])}, 0")
    for i in range(4):
        for b in range(2):
            a.e(f"v_dot2_f32_bf16 {v(vQn[b])}, {v(Q+4*b+i)}, {v(Q+4*b+i)}, {v(vQn[b])}")
        a.e("s_nop 2")
    for b in range(2):
        a.e(f"v_mov_b32 {v(t2)}, {v(vQn[b])}")
        a.e("s_nop 1")
        a.e(f"v_permlane32_swap_b32 {v(vQn[b])}, {v(t2)}")
        a.e("s_nop 1")
        a.e(f"v_add_f32 {v(vQn[b])}, {v(vQn[b])}, {v(t2)}")
    a.e("s_waitcnt vmcnt(2)")
    a.stamp()
    if OPT["attprio"]: a.e(f"s_setprio {OPT['attprio']}")
    bar()
    a.stamp()
    def kread(t, tag=None):
        a.lds(f"ds_read_b128 {v(KF[t&3],4)}, {v(vKa)} offset:{(t&15)*2048}", tag)
    def vread(t, tag=None):
        a.lds(f"ds_read_b128 {v(VF[t&3],4)}, {v(vVa)} offset:{(t&15)*2048}", tag)
        a.lds(f"ds_read_b128 {v(VF[t&3]+4,4)}, {v(vVa)} offset:{(t&15)*2048+512}", tag)
    kread(0, "K0")
    kread(1); kread(2)
    a.e(f"s_mov_b64 exec, s[{sEXV}:{sEXV+1}]")
    vread(0); vread(1)
    a.e("s_mov_b64 exec, -1")
    a.wait_lds("K0")
    for b in range(2):
        a.e(f"{MF32} {v(S[b],16)}, {v(KF[0],4)}, {v(Q+4*b,4)}, 0")
    a.e("s_nop 10")
    def tilemax(Sr, dst, tmp):
        a.e(f"v_max3_f32 {v(dst)}, {v(Sr)}, {v(Sr+1)}, {v(Sr+2)}")
        for k in range(3, 15, 2):
            a.e(f"v_max3_f32 {v(dst)}, {v(dst)}, {v(Sr+k)}, {v(Sr+k+1)}")
        a.e(f"v_max_f32 {v(dst)}, {v(dst)}, {v(Sr+15)}")
        a.e(f"v_mov_b32 {v(tmp)}, {v(dst)}")
        a.e("s_nop 1")
        a.e(f"v_permlane32_swap_b32 {v(dst)}, {v(tmp)}")
        a.e("s_nop 1")
        a.e(f"v_max_f32 {v(dst)}, {v(dst)}, {v(tmp)}")
    for b in range(2):
        tilemax(S[b], vM[b], t0)
        for i in range(16):
            a.e(f"v_sub_f32 {v(Cb[b]+i)}, 0, {v(vM[b])}")
        a.e("s_nop 0")
        a.e(f"{MF32} {v(S[b],16)}, {v(KF[0],4)}, {v(Q+4*b,4)}, {v(Cb[b],16)}")
    a.wait_lds_all()
    a.e("s_waitcnt vmcnt(0)")
    a.e(f"v_mov_b32 {v(t1)}, {f2u(2.0**40):#x}")
    a.e(f"v_cmp_le_f32 s[{sA0}:{sA0+1}], {v(NR+1)}, {v(t1)}")
    a.e(f"v_mul_f32 {v(t3)}, {f2u(1.03):#x}, {v(NR)}")
    for b in range(2):
        a.e(f"v_add_f32 {v(t0)}, {f2u(T_SAFE):#x}, {v(vM[b])}")
        a.e(f"v_mul_f32 {v(t1)}, {v(t0)}, {v(t0)}")
        a.e(f"v_mul_f32 {v(t2)}, {v(t3)}, {v(vQn[b])}")
        a.e(f"v_cmp_le_f32 s[{sA2}:{sA2+1}], 0, {v(t0)}")
        a.e(f"v_cmp_le_f32 s[{sA4}:{sA4+1}], {v(t2)}, {v(t1)}")
        a.e("s_nop 3")
        a.e(f"s_and_b64 s[{sA0}:{sA0+1}], s[{sA0}:{sA0+1}], s[{sA2}:{sA2+1}]")
        a.e(f"s_and_b64 s[{sA0}:{sA0+1}], s[{sA0}:{sA0+1}], s[{sA4}:{sA4+1}]")
    a.e(f"s_mov_b32 s{sCnt}, 0")
    a.e(f"s_cmp_eq_u64 s[{sA0}:{sA0+1}], -1")
    a.e(f"s_cbranch_scc0 {name}_slow")
    a.stamp()
    def ex(Sr, lo, hi):
        for i in range(lo, hi): a.e(f"v_exp_f32 {v(Sr+i)}, {v(Sr+i)}")
    def cv(Pr, Sr, lo, hi):
        for i in range(lo, hi): a.e(f"v_cvt_pk_bf16_f32 {v(Pr+i)}, {v(Sr+2*i)}, {v(Sr+2*i+1)}")
    def mf(D, A, B, C): a.e(f"{MF32} {v(D,16)}, {v(A,4)}, {v(B,4)}, {v(C,16)}")
    a.raw(".p2align 6")
    a.label(f"{name}_loop")
    for t in range(16):
        ex(S[0], 0, 6)
        mf(O[1], VF[(t-1)&3] + 4, P[1] + 4, O[1])
        if t % 2 == 0:
            a.e(f"s_mov_b64 exec, s[{sEXV}:{sEXV+1}]")
            vread(t + 2); vread(t + 3)
            a.e("s_mov_b64 exec, -1")
        ex(S[0], 6, 8); cv(P[0], S[0], 0, 4); ex(S[0], 8, 10)
        mf(O[0], VF[t&3], P[0], O[0])
        ex(S[0], 10, 16); cv(P[0], S[0], 4, 8)
        mf(S[0], KF[(t+1)&3], Q, Cb[0])
        ex(S[1], 0, 6)
        mf(O[0], VF[t&3] + 4, P[0] + 4, O[0])
        ex(S[1], 6, 8); cv(P[1], S[1], 0, 4); ex(S[1], 8, 10)
        mf(O[1], VF[t&3], P[1], O[1])
        ex(S[1], 10, 16); cv(P[1], S[1], 4, 8)
        mf(S[1], KF[(t+1)&3], Q + 4, Cb[1])
        if t % 2 == 0:
            kread(t + 3); kread(t + 4)
        else:
            a.e("s_waitcnt lgkmcnt(0)")
            if t % 4 == 3:
                if t == 15:
                    a.e(f"s_add_u32 s{sCnt}, s{sCnt}, 1")
                    a.e(f"s_cmp_lt_u32 s{sCnt}, 4")
                a.e("s_barrier")
    a.lds_q = []
    a.e(f"s_cbranch_scc1 {name}_loop")
    nbar["att"] += 16
    mf(O[1], VF[3] + 4, P[1] + 4, O[1])
    a.e(f"s_branch {name}_fin")
    a.label(f"{name}_slow")
    a.e(f"s_and_b32 s{T0}, s{sCnt}, 15")
    a.e(f"s_lshl_b32 s{T0}, s{T0}, 11")
    a.e(f"v_add_u32 {v(t2)}, s{T0}, {v(vKa)}")
    a.e(f"v_add_u32 {v(t3)}, s{T0}, {v(vVa)}")
    a.e(f"ds_read_b128 {v(KF[0],4)}, {v(t2)}")
    a.e(f"s_mov_b64 exec, s[{sEXV}:{sEXV+1}]")
    a.e(f"ds_read_b128 {v(VF[0],4)}, {v(t3)}")
    a.e(f"ds_read_b128 {v(VF[0]+4,4)}, {v(t3)} offset:512")
    a.e("s_mov_b64 exec, -1")
    a.e("s_waitcnt lgkmcnt(0)")
    for b in range(2):
        a.e(f"{MF32} {v(S[b],16)}, {v(KF[0],4)}, {v(Q+4*b,4)}, 0")
    a.e("s_nop 15")
    for b in range(2):
        tilemax(S[b], t1, t0)
        a.e(f"v_max_f32 {v(t1)}, {v(t1)}, {v(vM[b])}")
        a.e(f"v_sub_f32 {v(t2)}, {v(vM[b])}, {v(t1)}")
        a.e(f"v_exp_f32 {v(t2)}, {v(t2)}")
        a.e(f"v_mov_b32 {v(vM[b])}, {v(t1)}")
        for i in range(16):
            a.e(f"v_mul_f32 {v(O[b]+i)}, {v(O[b]+i)}, {v(t2)}")
        for i in range(16):
            a.e(f"v_sub_f32 {v(S[b]+i)}, {v(S[b]+i)}, {v(vM[b])}")
        ex(S[b], 0, 16)
        a.e("s_nop 0")
        cv(P[b], S[b], 0, 8)
        a.e("s_nop 1")
        mf(O[b], VF[0], P[b], O[b])
        mf(O[b], VF[0] + 4, P[b] + 4, O[b])
    a.e("s_nop 15")
    a.e(f"s_add_u32 s{sCnt}, s{sCnt}, 1")
    a.e(f"s_and_b32 s{T0}, s{sCnt}, 3")
    a.e(f"s_cmp_lg_u32 s{T0}, 0")
    a.e(f"s_cbranch_scc1 {name}_slow")
    a.e("s_barrier")
    a.e(f"s_cmp_lt_u32 s{sCnt}, 64")
    a.e(f"s_cbranch_scc1 {name}_slow")
    a.label(f"{name}_fin")
    a.stamp()
    def frag_offsets(swave):
        a.e(f"s_and_b32 s{T0}, s{swave}, 1")
        a.e(f"s_lshl_b32 s{T1}, s{sHQ}, 2")
        a.e(f"s_and_b32 s{T2}, s{swave}, 2")
        a.e(f"s_add_u32 s{T1}, s{T1}, s{T2}")
        a.e(f"s_lshl_b32 s{T2}, s{T0}, 5")
        a.e(f"s_add_u32 s{T1}, s{T1}, s{T2}")
        a.e(f"s_lshl_b32 s{T1}, s{T1}, 10")
        a.e(f"s_lshl_b32 s{T2}, s{sPB}, 16")
        a.e(f"s_add_u32 s{T2}, s{T2}, s{T1}")
        a.e(f"s_lshl_b32 s{T0}, s{sPB}, 10")
        a.e(f"s_lshl_b32 s{T3}, s{sHQ}, 4")
        a.e(f"s_add_u32 s{T0}, s{T0}, s{T3}")
        a.e(f"s_lshl_b32 s{T3}, s{swave}, 2")
        a.e(f"s_add_u32 s{T0}, s{T0}, s{T3}")
    frag_offsets(sWv)
    a.e(f"s_add_u32 s{T2}, s{T2}, {WS_OB}")
    a.e(f"s_add_u32 s{T0}, s{T0}, {WS_F3}")
    a.e("s_nop 1")
    a.e(f"v_rcp_f32 {v(t0)}, {v(O[0]+8)}")
    a.e(f"v_rcp_f32 {v(t1)}, {v(O[1]+8)}")
    for b in range(2):
        for j in range(8):
            a.e(f"v_mul_f32 {v(O[b]+j)}, {v(O[b]+j)}, {v(t1 if b else t0)}")
        for i in range(4):
            a.e(f"v_cvt_pk_bf16_f32 {v(P[b]+i)}, {v(O[b]+2*i)}, {v(O[b]+2*i+1)}")
        a.e(f"buffer_store_dwordx4 {v(P[b],4)}, {v(vL16)}, s[{sWS}:{sWS+3}], s{T2} offen offset:{b*1024} sc1")
    a.e(f"v_mov_b32 {v(t0)}, s{sTag}")
    a.e(f"v_lshrrev_b32 {v(t1)}, 3, {v(vL)}")
    a.e(f"v_lshlrev_b32 {v(t1)}, 24, {v(t1)}")
    a.e(f"v_lshl_add_u32 {v(t1)}, {v(vL)}, 7, {v(t1)}")
    a.e("s_waitcnt vmcnt(0)")
    a.e(f"buffer_store_dword {v(t0)}, {v(t1)}, s[{sWS}:{sWS+3}], s{T0} offen sc1")
    a.stamp()
    a.vm_q = []; a.lds_q = []
    OBR = [Cb[0] + 4*k for k in range(8)] + [O[0] + 4*k for k in range(8)]
    assert Cb[0] + 16 == Cb[1] and O[0] + 16 == O[1]
    WB = [KF[0], KF[1], KF[2], KF[3]]
    F = FinalCtx(a, name, "att", S[0], OBR, WB, vL, vL16, vH, vI, vTo, t0, t1, t2, t3, bar)
    F.setup()
    F.poll()
    F.load(0, 16)
    F.bpart()
    F.finish(None, None)

    role[0] = "bg"
    a.label(f"{name}_bg")
    a.vm_q = list(common_vm); a.lds_q = []
    a.nst = common_nst
    a.STREGS = list(range(86, 100))
    a.nv = common_end
    sU = sA5
    Aq = a.valloc(16, 4); Ak = a.valloc(16, 4); Av = a.valloc(16, 4); Hh = a.valloc(16, 4)
    M = a.valloc(24, 4)
    vG = a.valloc(1)
    ACCA = a.valloc(16, 4)
    vWg = a.valloc(1)
    free0 = a.nv
    XF = [a.valloc(4, 4), a.valloc(4, 4)]
    XH = [a.valloc(4, 4), a.valloc(4, 4)]
    WF = [[a.valloc(4, 4) for _ in range(3)] for _ in range(2)]
    vWrd = a.valloc(1)
    vXrd = [a.valloc(1) for _ in range(4)]
    vXhr = [a.valloc(1) for _ in range(4)]
    J = Aq; JX = Ak; JW = Av
    a.e(f"s_sub_u32 s{sU}, s{sWv}, 4")
    srd(a, sWQKV, P_WQKV, 512*3072)
    srd(a, sWOA, P_AWO, 512*1024)
    srd(a, sWOB, P_BWO, 512*1024)
    srd(a, sOUT, P_OUT, 2048*1024)
    srd(a, sGW, P_GW, 1024)
    a.e(f"s_lshl_b32 s{T0}, s{sRot}, 7")
    a.e(f"v_add_u32 {v(t0)}, s{T0}, {v(vL16)}")
    a.e(f"v_and_b32 {v(t0)}, 1023, {v(t0)}")
    a.e(f"s_mov_b32 m0, {L_GW}")
    a.e("s_nop 0")
    a.e(f"buffer_load_dwordx4 {v(t0)}, s[{sGW}:{sGW+3}], 0 offen lds")
    lane_consts()
    a.e(f"v_lshlrev_b32 {v(t0)}, 2, {v(vH)}")
    a.e(f"v_sub_u32 {v(t0)}, {v(vI)}, {v(t0)}")
    a.e(f"s_and_b32 s{T0}, s{sU}, 1")
    a.e(f"s_or_b32 s{T0}, s{sPB}, s{T0}")
    a.e(f"s_cmp_eq_u32 s{T0}, 0")
    a.e(f"s_cselect_b32 s{T0}, 0x1020, 32")
    a.e(f"v_add_u32 {v(t1)}, s{T0}, {v(t0)}")
    vNeg = Hh; vZero = Hh + 1; tt = Hh + 4
    a.e(f"v_mov_b32 {v(vNeg)}, {NEG_BIG:#x}")
    a.e(f"v_mov_b32 {v(vZero)}, 0")
    MS = [4, 6]
    regs = [(r, t0, M + r) for r in range(16)] + [(r, t1, M + 16 + (r - 8)) for r in range(8, 16)]
    for g0 in range(0, 24, 2):
        grp = regs[g0:g0+2]
        for k, (r, base, dst) in enumerate(grp):
            rc = (r & 3) + 8 * (r >> 2)
            a.e(f"v_subrev_u32 {v(tt+k)}, {rc}, {v(base)}")
            a.e(f"v_and_b32 {v(tt+k)}, 0xfffffff1, {v(tt+k)}")
            a.e(f"v_cmp_eq_u32 s[{MS[k]}:{MS[k]+1}], 0, {v(tt+k)}")
        a.e("s_nop 1")
        for k, (r, base, dst) in enumerate(grp):
            a.e(f"v_cndmask_b32 {v(dst)}, {v(vNeg)}, {v(vZero)}, s[{MS[k]}:{MS[k]+1}]")
    a.e(f"s_lshr_b32 s{T0}, s{sU}, 1")
    a.e(f"s_lshl_b32 s{T0}, s{T0}, 6")
    a.e(f"v_xor_b32 {v(vWrd)}, s{T0}, {v(vTr)}")
    a.e(f"v_add_u32 {v(vWrd)}, {WBASE}, {v(vWrd)}")
    a.e(f"s_and_b32 s{T0}, s{sU}, 1")
    a.e(f"s_lshl_b32 s{T0}, s{T0}, 12")
    for k in range(4):
        a.e(f"v_add_u32 {v(vXrd[k])}, s{T0}, {v(vXr[k])}")
        a.e(f"v_and_b32 {v(vXhr[k])}, 0xfffff7ff, {v(vXr[k])}")
        a.e(f"v_add_u32 {v(vXhr[k])}, {L_XH}, {v(vXhr[k])}")
    a.e(f"v_lshrrev_b32 {v(t0)}, 3, {v(vL)}")
    a.e(f"v_lshl_add_u32 {v(vWg)}, {v(t0)}, 11, {v(vW8)}")
    a.e(f"s_mul_i32 s{T0}, s{sU}, {16*3072}")
    a.e(f"s_lshl_b32 s{T1}, s{sHQ}, 7")
    a.e(f"s_add_u32 s{T0}, s{T0}, s{T1}")
    a.e(f"v_add_u32 {v(vWg)}, s{T0}, {v(vWg)}")
    vTch = a.valloc(1)
    a.e(f"v_mul_u32_u24 {v(vTch)}, 3072, {v(vL)}")
    a.e(f"s_min_u32 s{T0}, s{sU}, 2")
    a.e(f"s_lshl_b32 s{T0}, s{T0}, 10")
    a.e(f"s_lshl_b32 s{T1}, s{sHQ}, 7")
    a.e(f"s_add_u32 s{T0}, s{T0}, s{T1}")
    a.e(f"v_add_u32 {v(vTch)}, s{T0}, {v(vTch)}")
    def w_touch(c, dst):
        a.e(f"s_add_u32 s{T2}, s{sRot}, {c}")
        a.e(f"s_and_b32 s{T2}, s{T2}, 7")
        a.e(f"s_mul_i32 s{T3}, s{T2}, {64*3072}")
        a.vm(f"buffer_load_dword {v(dst)}, {v(vTch)}, s[{sWQKV}:{sWQKV+3}], s{T3} offen", "touch")
    GX = [Ak, Ak + 4, Ak + 8, Ak + 12]; GWf = [Av, Av + 4, Av + 8, Av + 12]
    vGx = [XH[0] + k for k in range(4)]; vGw = XH[1]; vG2 = XH[1] + 1
    a.e(f"s_lshr_b32 s{T0}, s{sU}, 1")
    a.e(f"s_lshl_b32 s{T0}, s{T0}, 12")
    for k in range(4):
        a.e(f"v_add_u32 {v(vGx[k])}, s{T0}, {v(vXr[k])}")
    a.e(f"v_lshlrev_b32 {v(vGw)}, 4, {v(vH)}")
    a.e(f"v_add_u32 {v(vGw)}, {L_GW}, {v(vGw)}")
    a.e(f"v_mov_b32 {v(vG)}, 0")
    a.e(f"v_mov_b32 {v(vG2)}, 0")
    a.e("s_waitcnt lgkmcnt(0)")
    a.e(f"s_add_u32 s{sTag}, s{sTag}, {TAGC:#x}")
    a.e(f"s_cmp_eq_u32 s{sU}, 0")
    a.e(f"s_cbranch_scc1 {name}_bg_nobulk")
    a.e(f"s_add_u32 s{T2}, s{sPG}, s{sU}")
    a.e(f"s_and_b32 s{T2}, s{T2}, 3")
    a.e(f"s_lshl_b32 s{sA1}, s{T2}, 14")
    a.e(f"s_add_u32 s{sA1}, s{sA1}, s{sA0}")
    a.e(f"s_lshl_b32 s{sA2}, s{T2}, 11")
    def xq_dma(c):
        a.e(f"s_add_u32 s{T0}, s{sRot}, {c}")
        a.e(f"s_and_b32 s{T0}, s{T0}, 7")
        a.e(f"s_lshl_b32 s{T0}, s{T0}, 7")
        a.e(f"s_add_u32 s{T0}, s{T0}, s{sA1}")
        a.e(f"s_add_u32 m0, s{sA2}, {c*8192}")
        a.e(f"s_add_u32 s{T1}, s{T0}, 8192")
        a.e(f"buffer_load_dwordx4 {v(vXe)}, s[{sX}:{sX+3}], s{T0} offen lds")
        a.e(f"s_add_u32 m0, s{sA2}, {c*8192 + 1024}")
        a.e("s_nop 0")
        a.e(f"buffer_load_dwordx4 {v(vXo)}, s[{sX}:{sX+3}], s{T1} offen lds")
    for c in range(NPRE): xq_dma(c)
    a.e(f"s_waitcnt vmcnt({2*NPRE})")
    bar()
    for c in range(NPRE, NMID): xq_dma(c)
    bar()
    for c in range(NMID, 8): xq_dma(c)
    a.e(f"s_branch {name}_bg_nojob")
    a.label(f"{name}_bg_nobulk")
    jX0 = Aq + 8; jX1 = Aq + 9; jW = Aq + 10
    a.e(f"v_and_b32 {v(t0)}, 15, {v(vL)}")
    a.e(f"v_lshrrev_b32 {v(t1)}, 1, {v(t0)}")
    a.e(f"v_lshrrev_b32 {v(t2)}, 4, {v(vL)}")
    a.e(f"v_xor_b32 {v(t1)}, {v(t1)}, {v(t2)}")
    a.e(f"v_lshlrev_b32 {v(t1)}, 4, {v(t1)}")
    a.e(f"v_lshl_add_u32 {v(t1)}, {v(t0)}, 7, {v(t1)}")
    a.e(f"s_lshl_b32 s{T0}, s{sPG}, 11")
    a.e(f"v_add_u32 {v(jX0)}, s{T0}, {v(t1)}")
    a.e(f"v_xor_b32 {v(jX1)}, 64, {v(jX0)}")
    a.e(f"v_lshlrev_b32 {v(t2)}, 8, {v(t2)}")
    a.e(f"v_bfe_u32 {v(t0)}, {v(vL)}, 2, 2")
    a.e(f"v_lshl_add_u32 {v(t2)}, {v(t0)}, 5, {v(t2)}")
    a.e(f"v_and_b32 {v(t0)}, 3, {v(vL)}")
    a.e(f"v_lshl_add_u32 {v(t2)}, {v(t0)}, 3, {v(t2)}")
    a.e(f"v_add_u32 {v(jW)}, {L_KW}, {v(t2)}")
    a.vm_q = []
    def jreads(s_):
        b = s_ & 3; c = s_ >> 1; u = s_ & 1
        a.lds(f"ds_read_b128 {v(JX+4*b,4)}, {v(jX1 if u else jX0)} offset:{c*8192}", f"j{s_}")
        a.lds(f"ds_read_b64_tr_b16 {v(JW+4*b,2)}, {v(jW)} offset:{s_*1024}", f"j{s_}")
        a.lds(f"ds_read_b64_tr_b16 {v(JW+4*b+2,2)}, {v(jW)} offset:{s_*1024+128}", f"j{s_}")
    a.e("s_waitcnt vmcnt(0)")
    a.e("s_barrier")
    a.STREGS = list(range(86, 100)) + list(range(44, 68))
    a.stamp()
    for s_ in range(4): jreads(s_)
    for s_ in range(16):
        a.wait_lds(f"j{s_}")
        b = s_ & 3
        JJ = J + 12 * (s_ & 1)
        Cc = "0" if s_ < 2 else v(JJ, 4)
        a.e(f"v_mfma_f32_16x16x32_bf16 {v(JJ,4)}, {v(JW+4*b,4)}, {v(JX+4*b,4)}, {Cc}")
        if s_ + 4 < 16: jreads(s_ + 4)
    a.e(f"s_lshl_b32 s{T0}, s{sPB}, 1")
    a.e(f"s_lshr_b32 s{T1}, s{sPG}, 1")
    a.e(f"s_add_u32 s{T0}, s{T0}, s{T1}")
    a.e(f"s_lshl_b32 s{T0}, s{T0}, 11")
    if WS_KV: a.e(f"s_add_u32 s{T0}, s{T0}, {WS_KV}")
    a.e(f"s_and_b32 s{T1}, s{sPG}, 1")
    a.e(f"v_and_b32 {v(t0)}, 15, {v(vL)}")
    a.e(f"v_bfe_u32 {v(t1)}, {v(vL)}, 4, 1")
    a.e("s_nop 2")
    for k in range(4):
        a.e(f"v_add_f32 {v(J+k)}, {v(J+k)}, {v(J+12+k)}")
    a.e(f"v_cvt_pk_bf16_f32 {v(J+4)}, {v(J)}, {v(J+1)}")
    a.e(f"v_cvt_pk_bf16_f32 {v(J+5)}, {v(J+2)}, {v(J+3)}")
    a.e(f"s_cmp_eq_u32 s{sKIND}, 0")
    a.e(f"s_cbranch_scc0 {name}_vkind")
    a.e(f"s_lshl_b32 s{T1}, s{T1}, 8")
    a.e(f"s_add_u32 s{T0}, s{T0}, s{T1}")
    a.e(f"v_lshlrev_b32 {v(t2)}, 4, {v(t0)}")
    a.e(f"v_lshl_add_u32 {v(t2)}, {v(t1)}, 9, {v(t2)}")
    a.e(f"v_lshl_add_u32 {v(t2)}, {v(vH)}, 3, {v(t2)}")
    a.e(f"buffer_store_dwordx2 {v(J+4,2)}, {v(t2)}, s[{sWS}:{sWS+3}], s{T0} offen sc1")
    a.e(f"v_mul_f32 {v(J+7)}, {v(J)}, {v(J)}")
    for k in range(1, 4):
        a.e(f"v_fmac_f32 {v(J+7)}, {v(J+k)}, {v(J+k)}")
    wave_red(a, J + 7, t3, "v_add_f32")
    a.e(f"s_branch {name}_jdone")
    a.label(f"{name}_vkind")
    a.e(f"s_lshl_b32 s{T1}, s{T1}, 9")
    a.e(f"s_add_u32 s{T0}, s{T0}, s{T1}")
    a.e(f"s_add_u32 s{T0}, s{T0}, 1024")
    a.e(f"v_bfe_u32 {v(t2)}, {v(t0)}, 2, 1")
    a.e(f"v_lshlrev_b32 {v(t2)}, 8, {v(t2)}")
    a.e(f"v_lshrrev_b32 {v(t3)}, 4, {v(vL)}")
    a.e(f"v_lshl_add_u32 {v(t2)}, {v(t3)}, 6, {v(t2)}")
    a.e(f"v_and_b32 {v(t3)}, 3, {v(t0)}")
    a.e(f"v_lshl_add_u32 {v(t2)}, {v(t3)}, 1, {v(t2)}")
    a.e(f"v_lshrrev_b32 {v(t3)}, 3, {v(t0)}")
    a.e(f"v_lshl_add_u32 {v(t2)}, {v(t3)}, 3, {v(t2)}")
    a.e(f"buffer_store_short {v(J+4)}, {v(t2)}, s[{sWS}:{sWS+3}], s{T0} offen sc1")
    a.e(f"buffer_store_short_d16_hi {v(J+4)}, {v(t2)}, s[{sWS}:{sWS+3}], s{T0} offen offset:16 sc1")
    a.e(f"buffer_store_short {v(J+5)}, {v(t2)}, s[{sWS}:{sWS+3}], s{T0} offen offset:32 sc1")
    a.e(f"buffer_store_short_d16_hi {v(J+5)}, {v(t2)}, s[{sWS}:{sWS+3}], s{T0} offen offset:48 sc1")
    a.e(f"v_max_f32 {v(J+7)}, abs({v(J)}), abs({v(J+1)})")
    a.e(f"v_max3_f32 {v(J+7)}, {v(J+7)}, abs({v(J+2)}), abs({v(J+3)})")
    wave_red(a, J + 7, t3)
    a.label(f"{name}_jdone")
    a.e("s_barrier")
    row_max(a, J + 7)
    a.e(f"v_mov_b32 {v(J+6)}, s{sTag}")
    a.e(f"s_lshl_b32 s{T0}, s{sPB}, 6")
    a.e(f"s_lshl_b32 s{T1}, s{sHQ}, 3")
    a.e(f"s_add_u32 s{T0}, s{T0}, s{T1}")
    a.e(f"s_add_u32 s{T0}, s{T0}, {WS_F1}")
    a.e(f"v_lshlrev_b32 {v(t1)}, 11, {v(vL)}")
    a.e("s_waitcnt vmcnt(0)")
    a.e(f"buffer_store_dwordx2 {v(J+6,2)}, {v(t1)}, s[{sWS}:{sWS+3}], s{T0} offen sc1")
    a.e(f"s_branch {name}_bg_join")
    a.label(f"{name}_bg_nojob")
    a.nst -= 1
    a.stamp()
    a.label(f"{name}_bg_join")
    a.stamp()
    def greads(ks):
        b = ks & 3
        a.lds(f"ds_read_b128 {v(GX[b],4)}, {v(vGx[ks&3])} offset:{(ks>>2)*8192}", f"g{ks}")
        a.lds(f"ds_read_b128 {v(GWf[b],4)}, {v(vGw)} offset:{ks*32}", f"g{ks}")
    for hf in range(2):
        a.e(f"s_waitcnt vmcnt({8 - 8*hf})")
        bar()
        if hf == 0: a.stamp()
        k0 = hf * 16
        for ks in range(k0, k0 + 4): greads(ks)
        for ks in range(k0, k0 + 16):
            a.wait_lds(f"g{ks}")
            b = ks & 3
            for i in range(4):
                acc = vG if i % 2 == 0 else vG2
                a.e(f"v_dot2_f32_bf16 {v(acc)}, {v(GX[b]+i)}, {v(GWf[b]+i)}, {v(acc)}")
            if ks + 4 < k0 + 16: greads(ks + 4)
    a.vm_q = []
    a.stamp()
    if OPT["bgprio"]: a.e(f"s_setprio {OPT['bgprio']}")
    sU1k, sU2k = sA3, sA4
    a.e(f"s_lshl_b32 s{sU1k}, s{sU}, 10")
    a.e(f"s_lshl_b32 s{sU2k}, s{sU}, 11")
    def w_dma(c):
        st = c & 1
        a.e(f"s_add_u32 s{T2}, s{sRot}, {c}")
        a.e(f"s_and_b32 s{T2}, s{T2}, 7")
        a.e(f"s_mul_i32 s{T3}, s{T2}, {64*3072}")
        for kind in range(3):
            for n in range(2):
                a.e(f"s_add_u32 m0, s{sU2k}, {WBASE + st*WST + kind*8192 + n*1024}")
                a.e(f"s_add_u32 s{T1}, s{T3}, {kind*1024 + n*8*3072}")
                a.vm(f"buffer_load_dwordx4 {v(vWg)}, s[{sWQKV}:{sWQKV+3}], s{T1} offen lds", f"g{c}")
    def kv_dma(i):
        for n in range(2):
            a.e(f"s_add_u32 m0, s{sU1k}, {L_RING + (i&3)*8192 + n*4096}")
            a.e(f"s_add_u32 s{T1}, s{sU1k}, {WS_KV + i*8192 + n*4096}")
            a.vm(f"buffer_load_dwordx4 {v(vL16)}, s[{sWS}:{sWS+3}], s{T1} offen lds", f"kv{i}")
    a.e("s_nop 4")
    a.e(f"v_add_f32 {v(vG)}, {v(vG)}, {v(vG2)}")
    a.e(f"v_mov_b32 {v(t0)}, {v(vG)}")
    a.e("s_nop 1")
    a.e(f"v_permlane32_swap_b32 {v(vG)}, {v(t0)}")
    a.e("s_nop 1")
    a.e(f"v_add_f32 {v(vG)}, {v(vG)}, {v(t0)}")
    a.e(f"v_mul_f32 {v(vG)}, {(LOG2E ^ 0x80000000):#x}, {v(vG)}")
    a.e(f"v_exp_f32 {v(vG)}, {v(vG)}")
    a.e("s_nop 0")
    a.e(f"v_add_f32 {v(vG)}, 1.0, {v(vG)}")
    a.e(f"v_rcp_f32 {v(vG)}, {v(vG)}")
    sHK = 70
    a.e(f"s_and_b32 s{T0}, s{sU}, 1")
    a.e(f"s_sub_u32 s{sHK}, 0, s{T0}")
    a.e(f"s_mov_b32 s{sHK+1}, s{sHK}")
    lbl = [0]
    def greads2(sn):
        c = sn >> 2; p = sn & 3; st = c & 1; se = sn & 1
        a.lds(f"ds_read_b128 {v(XF[se],4)}, {v(vXrd[p])} offset:{c*8192}", f"X{sn}")
        for t in range(3):
            a.lds(f"ds_read_b64_tr_b16 {v(WF[se][t],2)}, {v(vWrd)} offset:{st*WST + t*8192 + p*2048}", f"W{t}_{sn}")
            a.lds(f"ds_read_b64_tr_b16 {v(WF[se][t]+2,2)}, {v(vWrd)} offset:{st*WST + t*8192 + p*2048 + 512}", f"W{t}_{sn}")
        a.lds(f"ds_read_b128 {v(XH[se],4)}, {v(vXhr[p])} offset:{c*2048}", f"XH{sn}")
    def gmf(sn):
        se = sn & 1; first = sn == 0
        X = XF[se]; W = WF[se]
        def big(D, A, B, tags):
            a.wait_lds(*tags)
            Cc = "0" if first else v(D, 16)
            a.e(f"{MF32} {v(D,16)}, {v(A,4)}, {v(B,4)}, {Cc}")
        big(Aq, W[0], X, (f"X{sn}", f"W0_{sn}"))
        big(Ak, W[1], X, (f"W1_{sn}",))
        big(Av, X, W[2], (f"W2_{sn}",))
        a.wait_lds(f"XH{sn}")
        lbl[0] += 1
        a.e(f"s_cbranch_vccnz {name}_hv{lbl[0]}")
        big(Hh, W[1], XH[se], ())
        a.e(f"s_branch {name}_hd{lbl[0]}")
        a.label(f"{name}_hv{lbl[0]}")
        big(Hh, XH[se], W[2], ())
        a.label(f"{name}_hd{lbl[0]}")
    def gemm_chunk(c):
        a.e(f"s_mov_b64 vcc, s[{sHK}:{sHK+1}]")
        greads2(4 * c)
        for sn in range(4 * c, 4 * c + 4):
            if sn + 1 < 4 * c + 4: greads2(sn + 1)
            gmf(sn)
    def step_end(i, extra_tags=()):
        tags = list(extra_tags)
        if i + 2 <= 15: tags.append(f"kv{i+2}")
        a.wait_vm(*tags)
        a.wait_lds_all()
        if OPT.get("stepstamps"): a.stamp()
        bar()
    bar()
    a.stamp()
    kv_dma(3)
    w_dma(0)
    a.e(f"s_sub_u32 s{T0}, s{sA0}, 16384")
    a.e(f"s_cmp_eq_u32 s{sPB}, 0")
    a.e(f"s_cselect_b32 s{T0}, 0, s{T0}")
    for n in range(2):
        a.e(f"s_lshl_b32 s{T2}, s{sU}, 1")
        a.e(f"s_add_u32 s{T2}, s{T2}, s{sRot}")
        if n: a.e(f"s_add_u32 s{T2}, s{T2}, 1")
        a.e(f"s_and_b32 s{T2}, s{T2}, 7")
        a.e(f"s_lshl_b32 s{T2}, s{T2}, 7")
        a.e(f"s_add_u32 s{T2}, s{T2}, s{T0}")
        a.e(f"s_lshl_b32 s{T3}, s{sU}, 12")
        a.e(f"s_add_u32 m0, s{T3}, {L_XH + n*2048}")
        a.e(f"s_add_u32 s{T1}, s{T2}, 8192")
        a.vm(f"buffer_load_dwordx4 {v(vXe)}, s[{sX}:{sX+3}], s{T2} offen lds", "g0")
        a.e(f"s_add_u32 m0, s{T3}, {L_XH + n*2048 + 1024}")
        a.e("s_nop 0")
        a.vm(f"buffer_load_dwordx4 {v(vXo)}, s[{sX}:{sX+3}], s{T1} offen lds", "g0")
    w_dma(1)
    if OPT["l2pf"]:
        w_touch(2, ACCA + 2); w_touch(3, ACCA + 3); w_touch(4, ACCA + 4)
    a.e(f"s_or_b32 s{T0}, s2, s{sU}")
    a.e(f"s_cmp_lg_u32 s{T0}, 0")
    a.e(f"s_cbranch_scc1 {name}_noep")
    a.e(f"v_mov_b32 {v(t2)}, s{sTag}")
    a.e(f"v_lshlrev_b32 {v(t1)}, 24, {v(vL)}")
    a.e(f"s_mov_b32 s{T0}, {WS_EP}")
    a.e(f"buffer_store_dword {v(t2)}, {v(t1)}, s[{sWS}:{sWS+3}], s{T0} offen sc1")
    a.e("s_waitcnt vmcnt(0)")
    a.label(f"{name}_noep")
    step_end(0)
    kv_dma(4)
    step_end(1, ("g0",))
    for c in range(8):
        kv_dma(c + 5)
        if c >= 1 and c + 1 <= 7: w_dma(c + 1)
        if OPT["l2pf"]:
            if c + 5 <= 7: w_touch(c + 5, ACCA + 5 + c)
            elif c in (4, 5):
                if c == 4: a.e(f"v_lshlrev_b32 {v(vTch)}, 10, {v(vL)}")
                sr_ = sWOA if c == 4 else sWOB
                a.e(f"s_lshl_b32 s{T0}, s{sU}, 17")
                a.e(f"s_lshl_b32 s{T1}, s{sHQ}, 7")
                a.e(f"s_add_u32 s{T0}, s{T0}, s{T1}")
                a.e(f"s_add_u32 s{T1}, s{T0}, 65536")
                a.vm(f"buffer_load_dword {v(ACCA+2*c)}, {v(vTch)}, s[{sr_}:{sr_+3}], s{T0} offen", "touch")
                a.vm(f"buffer_load_dword {v(ACCA+2*c+1)}, {v(vTch)}, s[{sr_}:{sr_+3}], s{T1} offen", "touch")
        gemm_chunk(c)
        step_end(c + 2, (f"g{c+1}",) if c + 1 <= 7 else ())
    if OPT["prio2"]: a.e(f"s_setprio {OPT['prio2']}")
    a.nv = free0
    Kf = a.valloc(8, 4); Vf = a.valloc(8, 4); Qf = a.valloc(8, 4); Kp = a.valloc(8, 4); Vp = a.valloc(4, 4)
    PP = a.valloc(20, 4); ONES = a.valloc(4, 4)
    vA = a.valloc(1); mx = a.valloc(1); mt = a.valloc(1); vWo = a.valloc(1)
    OF2 = a.valloc(44, 4)
    kv_dma(13)
    a.e(f"s_lshl_b32 s{T1}, s{sHQ}, 7")
    a.e(f"s_lshl_b32 s{T3}, s{sU}, 17")
    a.e(f"s_add_u32 s{T1}, s{T1}, s{T3}")
    a.e(f"v_add_u32 {v(vWo)}, s{T1}, {v(vW8)}")
    sWoL = sA1
    a.e(f"s_lshl_b32 s{sWoL}, s{sU}, 14")
    def wo_dma(srdr, lbase, tag, lo, hi):
        for n in range(lo, hi):
            a.e(f"s_add_u32 m0, s{sWoL}, {lbase + n*1024}")
            a.e(f"s_mov_b32 s{T1}, {n*8192}")
            a.vm(f"buffer_load_dwordx4 {v(vWo)}, s[{srdr}:{srdr+3}], s{T1} offen lds", tag)
    for i in range(8):
        a.e(f"v_cvt_pk_bf16_f32 {v(Kf+i)}, {v(Ak+2*i)}, {v(Ak+2*i+1)}")
    for i in range(8):
        a.e(f"v_cvt_pk_bf16_f32 {v(Vf+i)}, {v(Av+2*i)}, {v(Av+2*i+1)}")
    for i in range(8):
        a.e(f"v_cvt_pk_bf16_f32 {v(Kp+i)}, {v(Hh+2*i)}, {v(Hh+2*i+1)}")
    a.e(f"s_lshl_b32 s{T0}, s{sU}, 12")
    a.e(f"s_add_u32 s{T0}, s{T0}, {L_EXCH}")
    a.e(f"v_add_u32 {v(vA)}, s{T0}, {v(vL16)}")
    a.lds(f"ds_write_b128 {v(vA)}, {v(Kf,4)}")
    a.lds(f"ds_write_b128 {v(vA)}, {v(Kf+4,4)} offset:1024")
    a.lds(f"ds_write_b128 {v(vA)}, {v(Vf+4,4)} offset:2048")
    a.lds(f"ds_write_b128 {v(vA)}, {v(Kp+4,4)} offset:3072")
    a.e(f"v_xor_b32 {v(vA)}, 4096, {v(vA)}")
    for i in range(16):
        a.e(f"v_mul_f32 {v(Aq+i)}, s{sC}, {v(Aq+i)}")
    for i in range(8):
        a.e(f"v_cvt_pk_bf16_f32 {v(Qf+i)}, {v(Aq+2*i)}, {v(Aq+2*i+1)}")
    for i in range(4):
        a.e(f"v_mov_b32 {v(ONES+i)}, 0x3f803f80")
    wo_dma(sWOA, L_WOA, "woa", 0, 4)
    step_end(10)
    a.e(f"s_bitcmp1_b32 s{sU}, 0")
    a.e(f"s_cbranch_scc1 {name}_ex1")
    a.e(f"ds_read_b128 {v(Vp,4)}, {v(vA)} offset:3072")
    a.e(f"s_branch {name}_ex2")
    a.label(f"{name}_ex1")
    a.e(f"ds_read_b128 {v(Kp,4)}, {v(vA)}")
    a.e(f"ds_read_b128 {v(Kp+4,4)}, {v(vA)} offset:1024")
    a.e(f"ds_read_b128 {v(Vp,4)}, {v(vA)} offset:2048")
    a.label(f"{name}_ex2")
    kv_dma(14)
    frag_offsets(sU)
    sOA, sF2 = sA2, 71
    a.e(f"s_add_u32 s{sOA}, s{T2}, {WS_OA}")
    a.e(f"s_add_u32 s{sF2}, s{T0}, {WS_F2}")
    a.e("s_waitcnt lgkmcnt(0)")
    SC = [Aq, OF2]; SP = [Ak, OF2 + 16]
    for hd in range(2):
        a.e(f"{MF32} {v(SC[hd],16)}, {v(Kf+4*hd,4)}, {v(Qf+4*hd,4)}, {v(M,16)}")
        a.e(f"{MF32} {v(SP[hd],16)}, {v(Kp+4*hd,4)}, {v(Qf+4*hd,4)}, {v(M+8,16)}")
    wo_dma(sWOA, L_WOA, "woa", 4, 8)
    def lattn1(hd):
        Sc = SC[hd]; Sp = SP[hd]; Ph = PP; mxr = mx
        vals = [Sc + r for r in range(16)] + [Sp + r for r in range(8, 16)]
        a.e(f"v_max3_f32 {v(mxr)}, {v(vals[0])}, {v(vals[1])}, {v(vals[2])}")
        k = 3
        while k < 24:
            if k + 1 < 24:
                a.e(f"v_max3_f32 {v(mxr)}, {v(mxr)}, {v(vals[k])}, {v(vals[k+1])}"); k += 2
            else:
                a.e(f"v_max_f32 {v(mxr)}, {v(mxr)}, {v(vals[k])}"); k += 1
        a.e(f"v_mov_b32 {v(t0)}, {v(mxr)}")
        a.e("s_nop 1")
        a.e(f"v_permlane32_swap_b32 {v(mxr)}, {v(t0)}")
        a.e("s_nop 1")
        a.e(f"v_max_f32 {v(mxr)}, {v(mxr)}, {v(t0)}")
        for r in vals: a.e(f"v_sub_f32 {v(r)}, {v(r)}, {v(mxr)}")
        for r in vals: a.e(f"v_exp_f32 {v(r)}, {v(r)}")
        a.e("s_nop 0")
        for i in range(12):
            a.e(f"v_cvt_pk_bf16_f32 {v(Ph+i)}, {v(vals[2*i])}, {v(vals[2*i+1])}")
        a.e("s_nop 1")
        On = Sc; Lr = Sp
        a.e(f"{MF32} {v(On,16)}, {v(Vf,4)}, {v(Ph,4)}, 0")
        a.e(f"{MF32} {v(Lr,16)}, {v(ONES,4)}, {v(Ph,4)}, 0")
        a.e(f"{MF32} {v(On,16)}, {v(Vf+4,4)}, {v(Ph+4,4)}, {v(On,16)}")
        a.e(f"{MF32} {v(Lr,16)}, {v(ONES,4)}, {v(Ph+4,4)}, {v(Lr,16)}")
        a.e(f"{MF32} {v(On,16)}, {v(Vp,4)}, {v(Ph+8,4)}, {v(On,16)}")
        a.e(f"{MF32} {v(Lr,16)}, {v(ONES,4)}, {v(Ph+8,4)}, {v(Lr,16)}")
    def lattn2(hd):
        On = SC[hd]; Lr = SP[hd]
        a.e(f"v_rcp_f32 {v(mt)}, {v(Lr)}")
        a.e("s_nop 0")
        for j in range(8):
            a.e(f"v_mul_f32 {v(On+8*hd+j)}, {v(On+8*hd+j)}, {v(mt)}")
        for i in range(4):
            a.e(f"v_cvt_pk_bf16_f32 {v(PP+12+4*hd+i)}, {v(On+8*hd+2*i)}, {v(On+8*hd+2*i+1)}")
        a.vm(f"buffer_store_dwordx4 {v(PP+12+4*hd,4)}, {v(vL16)}, s[{sWS}:{sWS+3}], s{sOA} offen offset:{hd*1024} sc1", "oa")
    lattn1(0)
    step_end(11)
    kv_dma(15)
    lattn2(0)
    lattn1(1)
    wo_dma(sWOA, L_WOA, "woa", 8, 12)
    a.e("s_nop 7")
    lattn2(1)
    step_end(12)
    a.e(f"v_mov_b32 {v(t0)}, s{sTag}")
    a.e(f"v_lshrrev_b32 {v(t1)}, 3, {v(vL)}")
    a.e(f"v_lshlrev_b32 {v(t1)}, 24, {v(t1)}")
    a.e(f"v_lshl_add_u32 {v(t1)}, {v(vL)}, 7, {v(t1)}")
    a.wait_vm("oa")
    a.vm(f"buffer_store_dword {v(t0)}, {v(t1)}, s[{sWS}:{sWS+3}], s{sF2} offen sc1", "f2")
    wo_dma(sWOA, L_WOA, "woa", 12, 16)
    wo_dma(sWOB, L_WOB, "wob", 0, 4)
    step_end(13)
    sF2p = 70
    a.e(f"s_lshl_b32 s{sF2p}, s{sPB}, 10")
    a.e(f"s_lshl_b32 s{T1}, s{sHQ}, 7")
    a.e(f"s_add_u32 s{sF2p}, s{sF2p}, s{T1}")
    a.e(f"s_lshr_b32 s{T1}, s{sU}, 1")
    a.e(f"s_lshl_b32 s{T2}, s{T1}, 2")
    a.e(f"s_add_u32 s{sF2p}, s{sF2p}, s{T2}")
    a.e(f"s_add_u32 s{sF2p}, s{sF2p}, {WS_F2}")
    a.e(f"v_and_b32 {v(t0)}, 15, {v(vL)}")
    a.e(f"v_lshlrev_b32 {v(t0)}, 3, {v(t0)}")
    sOS = sA2
    a.e(f"s_lshl_b32 s{sOS}, s{T1}, 15")
    a.e(f"s_add_u32 s{sOS}, s{sOS}, s{sA0}")
    a.e(f"s_add_u32 s{sOS}, s{sOS}, {WS_OA}")
    def pre12():
        wo_dma(sWOB, L_WOB, "wob", 4, 16)
    poll_flags(a, f"{name}_poll2", t0, sF2p, t1, pre=pre12)
    OFR = [Aq + 4*k for k in range(16)] + [OF2 + 4*k for k in range(11)] + [M + 4*k for k in range(5)]
    def oa_loads(lo, hi):
        for ks in range(lo, hi):
            if ks % 4 == 0: a.e(f"s_add_u32 s{T1}, s{sOS}, {ks*1024}")
            a.vm(f"buffer_load_dwordx4 {v(OFR[ks],4)}, {v(vL16)}, s[{sWS}:{sWS+3}], s{T1} offen offset:{(ks%4)*1024}", f"oa{ks}")
    oa_loads(0, 32)
    vAw = vA
    a.e(f"s_and_b32 s{T0}, s{sU}, 1")
    a.e(f"s_lshl_b32 s{T0}, s{T0}, 6")
    a.e(f"v_xor_b32 {v(vAw)}, s{T0}, {v(vTo)}")
    step_end(14)
    AB = [Kf, Kf + 4, Vf, Vf + 4]
    def areads(ks):
        w_ = AB[ks & 3]
        a.lds(f"ds_read_b64_tr_b16 {v(w_,2)}, {v(vAw)} offset:{L_WOA + ks*2048}", f"a{ks}")
        a.lds(f"ds_read_b64_tr_b16 {v(w_+2,2)}, {v(vAw)} offset:{L_WOA + ks*2048 + 1024}", f"a{ks}")
    def apart(lo, hi):
        for ks in range(lo, lo + 3): areads(ks)
        for ks in range(lo, hi):
            if ks + 3 < hi: areads(ks + 3)
            a.wait_vm(f"oa{ks}")
            a.wait_lds(f"a{ks}")
            Cc = "0" if ks == 0 else v(ACCA, 16)
            a.e(f"{MF32} {v(ACCA,16)}, {v(AB[ks&3],4)}, {v(OFR[ks],4)}, {Cc}")
    step_end(15, ("wob", "woa"))
    a.stamp()
    if OPT["prio2"]: a.e(f"s_setprio {OPT['bgprio']}")
    OBR = [Aq + 4*k for k in range(16)]
    F = FinalCtx(a, name, "bg", OF2, OBR, AB, vL, vL16, vH, vI, vTo, t0, t1, t2, t3, bar)
    F.setup()
    apart(0, 32)
    a.stamp()
    F.poll()
    F.load(0, 16)
    F.bpart()
    F.finish(ACCA, vG)
    a.label(f"{name}_end")
    a.e("s_endpgm")
    assert nbar["att"] == nbar["bg"], nbar
    print("barriers", nbar, file=sys.stderr)
    return a.text(), a.vmax

class FinalCtx:
    def __init__(self, a, name, role, ACCB, OBR, WB, vL, vL16, vH, vI, vTo, t0, t1, t2, t3, bar):
        self.__dict__.update(locals())
    def setup(self):
        a = self.a
        self.sB = sA4; self.sF = sA3
        a.e(f"s_lshl_b32 s{T0}, s{sPB}, 16")
        a.e(f"s_bfe_u32 s{T3}, s{sWv}, 0x10001")
        a.e(f"s_lshl_b32 s{T2}, s{T3}, 15")
        a.e(f"s_add_u32 s{T0}, s{T0}, s{T2}")
        a.e(f"s_lshr_b32 s{T1}, s{sWv}, 2")
        a.e(f"s_lshl_b32 s{T2}, s{T1}, 14")
        a.e(f"s_add_u32 s{T0}, s{T0}, s{T2}")
        a.e(f"s_add_u32 s{self.sB}, s{T0}, {WS_OB}")
        a.e(f"s_lshl_b32 s{self.sF}, s{sPB}, 10")
        a.e(f"s_lshl_b32 s{T2}, s{sHQ}, 7")
        a.e(f"s_add_u32 s{self.sF}, s{self.sF}, s{T2}")
        a.e(f"s_lshl_b32 s{T2}, s{T1}, 6")
        a.e(f"s_add_u32 s{self.sF}, s{self.sF}, s{T2}")
        a.e(f"s_lshl_b32 s{T2}, s{T3}, 2")
        a.e(f"s_add_u32 s{self.sF}, s{self.sF}, s{T2}")
        a.e(f"s_add_u32 s{self.sF}, s{self.sF}, {WS_F3}")
        a.e(f"v_and_b32 {v(self.t3)}, 7, {v(self.vL)}")
        a.e(f"v_lshlrev_b32 {v(self.t3)}, 3, {v(self.t3)}")
        a.e(f"s_and_b32 s{T0}, s{sWv}, 1")
        a.e(f"s_lshl_b32 s{T0}, s{T0}, 6")
        a.e(f"v_xor_b32 {v(self.t2)}, s{T0}, {v(self.vTo)}")
        a.e(f"s_lshl_b32 s{T0}, s{T1}, 15")
        a.e(f"s_add_u32 s{T0}, s{T0}, {L_WOB}")
        a.e(f"v_add_u32 {v(self.t2)}, s{T0}, {v(self.t2)}")
    def poll(self):
        poll_flags(self.a, f"{self.name}_{self.role}_poll3", self.t3, self.sF, self.t1)
        self.a.stamp()
    def load(self, lo, hi):
        a = self.a
        for ks in range(lo, hi):
            if ks % 4 == 0: a.e(f"s_add_u32 s{T1}, s{self.sB}, {ks*1024}")
            a.vm(f"buffer_load_dwordx4 {v(self.OBR[ks],4)}, {v(self.vL16)}, s[{sWS}:{sWS+3}], s{T1} offen offset:{(ks%4)*1024}", f"ob{ks}")
    def rd(self, ks):
        a = self.a; w_ = self.WB[ks & 3]
        a.lds(f"ds_read_b64_tr_b16 {v(w_,2)}, {v(self.t2)} offset:{ks*2048}", f"f{ks}")
        a.lds(f"ds_read_b64_tr_b16 {v(w_+2,2)}, {v(self.t2)} offset:{ks*2048+1024}", f"f{ks}")
    def bpart(self):
        a = self.a
        for ks in range(3): self.rd(ks)
        for ks in range(16):
            if ks + 3 < 16: self.rd(ks + 3)
            a.wait_vm(f"ob{ks}")
            a.wait_lds(f"f{ks}")
            Cc = "0" if ks == 0 else v(self.ACCB, 16)
            a.e(f"{MF32} {v(self.ACCB,16)}, {v(self.WB[ks&3],4)}, {v(self.OBR[ks],4)}, {Cc}")
        a.stamp()
    def finish(self, ACCA, vG):
        a = self.a; t0 = self.t0; t1 = self.t1; t3 = self.t3; ACCB = self.ACCB
        a.e(f"s_and_b32 s{T0}, s{sWv}, 3")
        a.e(f"s_lshl_b32 s{T0}, s{T0}, 12")
        a.e(f"s_add_u32 s{T0}, s{T0}, {L_RED}")
        a.e(f"v_add_u32 {v(t3)}, s{T0}, {v(self.vL16)}")
        if self.role == "att":
            a.e("s_nop 12")
            for i in range(4):
                a.e(f"ds_write_b128 {v(t3)}, {v(ACCB+4*i,4)} offset:{i*1024}")
            a.e("s_waitcnt lgkmcnt(0)")
            self.bar()
            a.stamp(); a.stamp(True)
            a.dump_stamps(0, sWv, sWS, self.WB[0], self.vL, T0)
            a.e("s_endpgm")
            return
        a.e(f"v_sub_f32 {v(t1)}, 1.0, {v(vG)}")
        for i in range(16):
            a.e(f"v_mul_f32 {v(ACCA+i)}, {v(ACCA+i)}, {v(vG)}")
        a.e(f"v_lshlrev_b32 {v(t0)}, 10, {v(self.vI)}")
        a.e(f"v_lshl_add_u32 {v(t0)}, {v(self.vH)}, 4, {v(t0)}")
        a.e(f"s_lshl_b32 s{T0}, s{sPB}, 16")
        a.e(f"s_bfe_u32 s{T1}, s{sWv}, 0x10001")
        a.e(f"s_lshl_b32 s{T1}, s{T1}, 15")
        a.e(f"s_add_u32 s{T0}, s{T0}, s{T1}")
        a.e(f"s_lshl_b32 s{T1}, s{sHQ}, 7")
        a.e(f"s_add_u32 s{T0}, s{T0}, s{T1}")
        a.e(f"s_and_b32 s{T1}, s{sWv}, 1")
        a.e(f"s_lshl_b32 s{T1}, s{T1}, 6")
        a.e(f"s_add_u32 s{T0}, s{T0}, s{T1}")
        for i in range(16):
            a.e(f"v_fmac_f32 {v(ACCA+i)}, {v(ACCB+i)}, {v(t1)}")
        self.bar()
        R = self.OBR[4]
        for i in range(4):
            a.e(f"ds_read_b128 {v(R+4*i,4)}, {v(t3)} offset:{i*1024}")
        for i in range(4):
            a.e(f"s_waitcnt lgkmcnt({3-i})")
            for k in range(4):
                a.e(f"v_fmac_f32 {v(ACCA+4*i+k)}, {v(R+4*i+k)}, {v(t1)}")
        for i in range(8):
            a.e(f"v_cvt_pk_bf16_f32 {v(R+i)}, {v(ACCA+2*i)}, {v(ACCA+2*i+1)}")
        a.e("s_nop 1")
        for jj in range(2):
            a.e(f"v_permlane32_swap_b32 {v(R+4*jj)}, {v(R+4*jj+2)}")
            a.e(f"v_permlane32_swap_b32 {v(R+4*jj+1)}, {v(R+4*jj+3)}")
        a.e("s_nop 1")
        for jj in range(2):
            a.e(f"buffer_store_dwordx4 {v(R+4*jj,4)}, {v(t0)}, s[{sOUT}:{sOUT+3}], s{T0} offen offset:{jj*32}")
        a.stamp(); a.stamp(True)
        a.dump_stamps(0, sWv, sWS, R + 8, self.vL, T0)

NAME = "gated_mix__sliding_local_dilated__grouped_kv_mqa__prompt"
def build():
    head = open(f"cdna_kernels/{NAME}.s.ref").read().splitlines()
    hdr = [l for l in head if l.startswith(";") and "@launch" not in l and "Override launch" not in l and "grid=ceil" not in l]
    out = "\n".join(hdr) + "\n"
    n = NAME + "_kernel"
    out += f"; @launch grid=(256,1,1) block=(512,1,1) lds={LDS_TOTAL}\n"
    out += '.amdgcn_target "amdgcn-amd-amdhsa--gfx950"\n'
    body, nv = gen_fused(n)
    out += kernel_header(n) + body + kernel_desc(n, nv)
    print("vgprs", nv, "lines", len(body.splitlines()), file=sys.stderr)
    return out
if __name__ == "__main__":
    if "--stamps" in sys.argv:
        Asm.STAMPS = True; sys.argv.remove("--stamps")
    for x in list(sys.argv[1:]):
        if "=" in x:
            k_, v_ = x.split("="); OPT[k_] = int(v_); sys.argv.remove(x)
    dst = sys.argv[1] if len(sys.argv) > 1 else f"cdna_kernels/{NAME}.s"
    open(dst, "w").write(build())
```
